```python
import torch

def _softmax(x, axis=-1):
    return torch.softmax(x, dim=axis)
def _gelu(x):
    return torch.nn.functional.gelu(x, approximate="tanh")
def _silu(x):
    return torch.nn.functional.silu(x)
def _sigmoid(x):
    return torch.sigmoid(x)
def _layernorm(x, axis=-1, eps=1e-5):
    m = x.mean(dim=axis, keepdim=True)
    v = x.var(dim=axis, keepdim=True, unbiased=False)
    return (x - m) / torch.sqrt(v + eps)
def _scatter_add(tgt, idx, src, axis=0):
    return tgt.clone().index_add_(axis, idx, src)
def _segment_sum(src, seg, n):
    out = torch.zeros((n,) + src.shape[1:], dtype=src.dtype)
    return out.index_add_(0, seg, src)
def _pad(x, pw):
    flat = tuple(v for pair in reversed(pw) for v in pair)
    return torch.nn.functional.pad(x, flat)

kernel_name = 'gather_scatter__cheap_equivariant_egnn__graph'

def setup_inputs():

    _w = (lambda a: (lambda t: t.to(torch.bfloat16) if t.is_floating_point() else t)(torch.as_tensor(a)))
    N, deg, D, De = 25000, 16, 128, max(0, 1)
    E = N * deg
    return {
        "h": _w((lambda *s: torch.randn(*s, dtype=torch.bfloat16) * 0.2)(N, D)),
        "pos": _w((lambda *s: torch.randn(*s, dtype=torch.bfloat16) * 0.8)(N, 3)),
        "e_attr": _w((lambda *s: torch.randn(*s, dtype=torch.bfloat16) * 0.8)(E, De)),
        "src": _w((lambda lo, hi, *s: torch.randint(lo, hi, s))(0, N, E).to(torch.int64)),
        "dst": _w((lambda lo, hi, *s: torch.randint(lo, hi, s))(0, N, E).to(torch.int64)),
        "w_e": _w(0.1 * (lambda *s: torch.randn(*s, dtype=torch.bfloat16) * 0.8)(2 * D + 1 + De, D)),
        "w_x": _w(0.1 * (lambda *s: torch.randn(*s, dtype=torch.bfloat16) * 0.2)(D, 1)),
        "w_h": _w(0.1 * (lambda *s: torch.randn(*s, dtype=torch.bfloat16) * 0.2)(2 * D, D)),
    }

def reference(h, pos, e_attr, src, dst, w_e, w_x, w_h):
    N, D = h.shape[0], h.shape[1]
    diff = pos[dst] - pos[src]
    dist2 = torch.sum(diff * diff, axis=-1, keepdims=True)
    e_in = torch.concatenate([h[dst], h[src], dist2, e_attr], axis=-1)
    m_ij = _silu(e_in @ w_e)
    coord_scale = m_ij @ w_x
    pos_new = pos + _segment_sum(diff * coord_scale, dst, N)
    m_i = _segment_sum(m_ij, dst, N)
    h_new = h + _silu(torch.concatenate([h, m_i], axis=-1) @ w_h)
    return h_new, pos_new
```

```python
import sys

N = 25000
E = 400000
NB = 98
NCH = 128
CH = 3128
CHB = CH * 8
WS_B = 0
WS_REC = 0x640000
WS_OFF = 0x960000
WS_W = 0x990000
WS_END = WS_W + 3 * 32768 + 4096
NLOG2E = 0xBFB8AA3B
NLN2 = 0xBF317218

OPT = dict(stamps=False, st_k1='sc1', st_out='', )


class Asm:
    def __init__(self):
        self.l = []

    def __call__(self, s):
        for x in s.split('\n'):
            x = x.strip()
            if x:
                self.l.append(x)

    def text(self):
        return '\n'.join((x if x.endswith(':') or x.startswith('.') else '    ' + x) for x in self.l) + '\n'


def vr(a, n):
    return f'v[{a}:{a + n - 1}]' if n > 1 else f'v{a}'


def sr(a, n):
    return f's[{a}:{a + n - 1}]' if n > 1 else f's{a}'


def srd(a, d, base, off, nrec, stride=0):
    if off == 0:
        a(f's_mov_b32 s{d}, s{base}')
        if stride:
            a(f's_or_b32 s{d + 1}, s{base + 1}, {stride << 16:#x}')
        else:
            a(f's_mov_b32 s{d + 1}, s{base + 1}')
    else:
        a(f's_add_u32 s{d}, s{base}, {off}')
        a(f's_addc_u32 s{d + 1}, s{base + 1}, 0')
        assert not stride
    a(f's_mov_b32 s{d + 2}, {nrec}')
    a(f's_mov_b32 s{d + 3}, 0x20000')


def mfma(d, A, B, C=None):
    c = vr(d, 16) if C is None else C
    return f'v_mfma_f32_32x32x16_bf16 {vr(d, 16)}, {vr(A, 4)}, {vr(B, 4)}, {c}'


K1_BIN, K1_GEMM, K1_PREP = NCH, 196, 13
K1_GRID = K1_BIN + K1_GEMM + K1_PREP


def gen_k1(a):
    st = OPT['st_k1']
    a('.p2align 8')
    a('.globl egnn_k1_kernel')
    a('.type egnn_k1_kernel,@function')
    a('egnn_k1_kernel:')
    a(f'''
    s_load_dwordx16 s[36:51], s[0:1], 0
    s_load_dwordx2 s[52:53], s[0:1], 80
    s_cmp_lt_u32 s2, {K1_BIN}
    s_cbranch_scc1 K1_BIN
    s_cmp_lt_u32 s2, {K1_BIN + K1_GEMM}
    s_cbranch_scc1 K1_GEMM
    s_cmp_lt_u32 s2, {K1_GRID - 1}
    s_cbranch_scc1 K1_PREP
    s_cmp_lt_u32 s2, {K1_GRID}
    s_cbranch_scc1 K1_CONST
    s_endpgm
    ''')
    HIST, BASE, SORTED = 0, 1024, 2048
    a('K1_BIN:')
    a(f'''
    v_lshlrev_b32 v1, 2, v0
    v_mov_b32 v2, 0
    s_mul_i32 s3, s2, {CH}
    v_add_u32 v3, s3, v1
    v_add_u32 v4, {391 * 4}, v3
    v_cmp_gt_u32 vcc, 256, v0
    s_and_saveexec_b64 s[20:21], vcc
    ds_write_b32 v1, v2 offset:{HIST}
    s_mov_b64 exec, s[20:21]
    s_mov_b32 s22, {E}
    v_cmp_gt_u32 s[24:25], s22, v3
    v_cmp_gt_u32 s[26:27], s22, v4
    v_cmp_gt_u32 vcc, 391, v0
    v_mov_b32 v5, 0x7fffff00
    s_and_b64 s[24:25], s[24:25], vcc
    s_and_b64 s[26:27], s[26:27], vcc
    v_lshlrev_b32 v6, 2, v3
    v_lshlrev_b32 v7, 2, v4
    v_lshlrev_b32 v8, 1, v3
    v_lshlrev_b32 v9, 1, v4
    v_cndmask_b32_e64 v6, v5, v6, s[24:25]
    v_cndmask_b32_e64 v7, v5, v7, s[26:27]
    v_cndmask_b32_e64 v8, v5, v8, s[24:25]
    v_cndmask_b32_e64 v9, v5, v9, s[26:27]
    s_waitcnt lgkmcnt(0)
    ''')
    srd(a, 4, 44, 0, E * 4)
    srd(a, 8, 42, 0, E * 4)
    srd(a, 12, 40, 0, E * 2)
    DST, SRC, EA, BK, RK, RC = 12, 20, 28, 32, 40, 48
    a(f'''
    buffer_load_dwordx4 {vr(DST, 4)}, v6, s[4:7], 0 offen
    buffer_load_dwordx4 {vr(DST + 4, 4)}, v7, s[4:7], 0 offen
    buffer_load_dwordx4 {vr(SRC, 4)}, v6, s[8:11], 0 offen
    buffer_load_dwordx4 {vr(SRC + 4, 4)}, v7, s[8:11], 0 offen
    buffer_load_dwordx2 {vr(EA, 2)}, v8, s[12:15], 0 offen
    buffer_load_dwordx2 {vr(EA + 2, 2)}, v9, s[12:15], 0 offen
    s_mul_i32 s3, s2, {CHB}
    s_add_u32 s3, s3, {WS_REC}
    ''')
    srd(a, 16, 52, 's3', CHB)
    a(f'''
    s_lshl_b32 s3, s2, 10
    s_add_u32 s3, s3, {WS_OFF}
    ''')
    srd(a, 28, 52, 's3', 1024)
    a(f'''
    s_movk_i32 s22, 21400
    s_movk_i32 s23, -98
    v_mov_b32 v10, 1
    s_barrier
    s_waitcnt vmcnt(4)
    ''')
    for i in range(8):
        a(f'v_mul_u32_u24 v{BK + i}, s22, v{DST + i}')
    for i in range(8):
        a(f'v_lshrrev_b32 v{BK + i}, 21, v{BK + i}')
    for i in range(8):
        a(f'v_mad_i32_i24 v{DST + i}, v{BK + i}, s23, v{DST + i}')
    for i in range(8):
        a(f'v_lshlrev_b32 v{BK + i}, 2, v{BK + i}')
    for g in range(2):
        a(f's_mov_b64 exec, s[{24 + 2 * g}:{25 + 2 * g}]')
        for i in range(4 * g, 4 * g + 4):
            a(f'ds_add_rtn_u32 v{RK + i}, v{BK + i}, v10 offset:{HIST}')
    a('s_mov_b64 exec, -1')
    a('s_waitcnt vmcnt(0)')
    for i in range(8):
        a(f'v_lshl_or_b32 v{RC + 2 * i}, v{DST + i}, 16, v{SRC + i}')
        if i & 1:
            a(f'v_and_b32 v{RC + 2 * i + 1}, 0xffff0000, v{EA + i // 2}')
        else:
            a(f'v_lshlrev_b32 v{RC + 2 * i + 1}, 16, v{EA + i // 2}')
    a(f'''
    v_and_b32 v1, 63, v0
    v_lshlrev_b32 v1, 4, v1
    s_waitcnt lgkmcnt(0)
    s_barrier
    ds_read_b128 v[4:7], v1 offset:{HIST}
    s_waitcnt lgkmcnt(0)
    v_add_u32 v12, v4, v5
    v_add3_u32 v14, v12, v6, v7
    v_add_u32 v13, v12, v6
    v_mov_b32 v15, v14
    s_nop 1
    v_add_u32_dpp v15, v15, v15 row_shr:1 row_mask:0xf bank_mask:0xf
    s_nop 1
    v_add_u32_dpp v15, v15, v15 row_shr:2 row_mask:0xf bank_mask:0xf
    s_nop 1
    v_add_u32_dpp v15, v15, v15 row_shr:4 row_mask:0xf bank_mask:0xf
    s_nop 1
    v_add_u32_dpp v15, v15, v15 row_shr:8 row_mask:0xf bank_mask:0xf
    s_nop 1
    v_add_u32_dpp v15, v15, v15 row_bcast:15 row_mask:0xa bank_mask:0xf
    s_nop 1
    v_add_u32_dpp v15, v15, v15 row_bcast:31 row_mask:0xc bank_mask:0xf
    v_sub_u32 v16, v15, v14
    v_add_u32 v17, v16, v4
    v_add_u32 v18, v16, v12
    v_add_u32 v19, v16, v13
    ds_write_b128 v1, v[16:19] offset:{BASE}
    ''')
    for i in range(8):
        a(f'ds_read_b32 v{20 + i}, v{BK + i} offset:{BASE}')
    a(f'''
    v_lshl_or_b32 v16, v4, 16, v16
    v_lshl_or_b32 v17, v5, 16, v17
    v_lshl_or_b32 v18, v6, 16, v18
    v_lshl_or_b32 v19, v7, 16, v19
    v_lshlrev_b32 v1, 4, v0
    buffer_store_dwordx4 v[16:19], v1, s[28:31], 0 offen {st}
    s_waitcnt lgkmcnt(0)
    ''')
    for i in range(8):
        a(f'v_add_lshl_u32 v{20 + i}, v{20 + i}, v{RK + i}, 3')
    for g in range(2):
        a(f's_mov_b64 exec, s[{24 + 2 * g}:{25 + 2 * g}]')
        for i in range(4 * g, 4 * g + 4):
            a(f'ds_write_b64 v{20 + i}, {vr(RC + 2 * i, 2)} offset:{SORTED}')
    a(f'''
    s_mov_b64 exec, -1
    s_movk_i32 s20, 8192
    s_movk_i32 s21, 16384
    s_movk_i32 s22, 24576
    s_waitcnt lgkmcnt(0)
    s_barrier
    ''')
    for i in range(4):
        a(f'ds_read_b128 {vr(4 + 4 * i, 4)}, v1 offset:{SORTED + 8192 * i}')
    for i in range(4):
        a(f's_waitcnt lgkmcnt({3 - i})')
        a(f'buffer_store_dwordx4 {vr(4 + 4 * i, 4)}, v1, s[16:19], {["0", "s20", "s21", "s22"][i]} offen {st}')
    a('s_endpgm')

    HT, WT = 0, 32768
    a('K1_GEMM:')
    a(f'''
    v_lshrrev_b32 v1, 6, v0
    v_and_b32 v0, 63, v0
    v_readfirstlane_b32 s24, v1                 ; wave
    s_sub_u32 s3, s2, {K1_BIN}
    s_lshl_b32 s20, s3, 15
    s_sub_u32 s21, {N * 256}, s20
    s_min_u32 s21, s21, 32768
    v_lshrrev_b32 v2, 4, v0
    v_and_b32 v3, 15, v0                        ; slot
    s_and_b32 s25, s24, 3
    s_lshl_b32 s25, s25, 2
    v_add_u32 v4, s25, v2                       ; row & 15
    v_xor_b32 v4, v4, v3
    v_lshlrev_b32 v4, 4, v4
    v_lshl_add_u32 v4, v2, 8, v4
    v_lshlrev_b32 v5, 2, v2
    v_xor_b32 v5, v5, v3
    v_lshlrev_b32 v5, 4, v5
    v_lshl_add_u32 v5, v2, 8, v5
    s_lshl_b32 s26, s24, 10
    s_waitcnt lgkmcnt(0)
    ''')
    srd(a, 4, 36, 's20', 's21')
    srd(a, 8, 46, 128 * 256, 32768)
    srd(a, 12, 52, 's20', 's21')
    for i in range(4):
        a(f'''
        s_add_u32 s27, s26, {8192 * i}
        s_add_u32 m0, s26, {HT + 8192 * i}
        s_add_u32 s28, s26, {WT + 8192 * i}
        buffer_load_dwordx4 v4, s[4:7], s27 offen lds
        s_mov_b32 m0, s28
        s_nop 0
        buffer_load_dwordx4 v5, s[8:11], s27 offen lds
        ''')
    a(f'''
    s_lshr_b32 s29, s24, 1                      ; nt
    s_and_b32 s30, s24, 1                       ; ch
    v_and_b32 v6, 31, v0                        ; i
    v_lshrrev_b32 v7, 5, v0                     ; h
    v_xor_b32 v8, v7, v3                        ; h ^ (i&15)
    v_lshlrev_b32 v8, 4, v8
    v_lshl_add_u32 v8, v6, 8, v8
    s_lshl_b32 s31, s29, 13
    v_add_u32 v8, s31, v8
    v_lshrrev_b32 v9, 2, v3                     ; r
    v_lshl_add_u32 v10, v7, 3, v9               ; 8h + r
    v_lshlrev_b32 v10, 8, v10
    v_and_b32 v11, 1, v2                        ; gq&1
    v_lshl_add_u32 v10, v11, 5, v10
    v_and_b32 v11, 3, v0                        ; cc
    v_lshl_add_u32 v10, v11, 3, v10
    s_lshl_b32 s31, s30, 1
    v_xor_b32 v11, s31, v9                      ; ct0 ^ r
    v_lshl_add_u32 v12, v11, 6, v10
    v_xor_b32 v13, 64, v12
    ''')
    for s in range(1, 8):
        a(f'v_xor_b32 v{16 + s}, {32 * s}, v8')
    a(f'''
    v_lshlrev_b32 v14, 10, v7
    v_lshl_add_u32 v14, v6, 2, v14
    s_lshl_b32 s31, s29, 13
    s_lshl_b32 s33, s30, 7
    s_add_u32 s31, s31, s33
    s_add_u32 s32, s31, 4096
    s_mov_b32 s34, {NLOG2E:#x}
    s_mov_b32 s35, {NLOG2E:#x}
    s_waitcnt vmcnt(0)
    s_barrier
    ''')
    H, W0, W1, D0, D1 = 24, 40, 56, 72, 88
    for s in range(8):
        q = 4 * (s & 3)
        a(f'ds_read_b128 {vr(H + q, 4)}, v{8 if s == 0 else 16 + s} offset:{HT}')
        for rr in range(2):
            a(f'ds_read_b64_tr_b16 {vr(W0 + q + 2 * rr, 2)}, v12 offset:{WT + 4096 * s + 1024 * rr}')
        for rr in range(2):
            a(f'ds_read_b64_tr_b16 {vr(W1 + q + 2 * rr, 2)}, v13 offset:{WT + 4096 * s + 1024 * rr}')
        if s >= 2:
            k = s - 2
            q = 4 * (k & 3)
            a('s_waitcnt lgkmcnt(10)')
            a(mfma(D0, H + q, W0 + q, '0' if k == 0 else None))
            a(mfma(D1, H + q, W1 + q, '0' if k == 0 else None))
    for k in (6, 7):
        q = 4 * (k & 3)
        a(f's_waitcnt lgkmcnt({5 * (7 - k)})')
        a(mfma(D0, H + q, W0 + q))
        a(mfma(D1, H + q, W1 + q))
    a('s_nop 10')
    for r in range(0, 16, 2):
        a(f'v_pk_mul_f32 {vr(D0 + r, 2)}, {vr(D0 + r, 2)}, s[34:35]')
    for r in range(0, 16, 2):
        a(f'v_pk_mul_f32 {vr(D1 + r, 2)}, {vr(D1 + r, 2)}, s[34:35]')
    for r in range(16):
        a(f'v_cvt_pk_bf16_f32 v{24 + r}, v{D0 + r}, v{D1 + r}')
        jj, ii = r >> 2, r & 3
        a(f'buffer_store_dword v{24 + r}, v14, s[12:15], {"s31" if jj < 2 else "s32"} offen offset:{(jj & 1) * 2048 + ii * 256} {st}')
    a('s_endpgm')

    a('K1_PREP:')
    a(f'''
    s_sub_u32 s3, s2, {K1_BIN + K1_GEMM}
    s_lshr_b32 s20, s3, 2                       ; matrix
    s_and_b32 s21, s3, 3                        ; tile
    v_lshrrev_b32 v1, 6, v0                     ; s
    v_and_b32 v2, 31, v0                        ; i
    v_bfe_u32 v3, v0, 5, 1                      ; h
    ; column
    s_lshr_b32 s22, s21, 1
    s_lshl_b32 s22, s22, 6
    s_and_b32 s23, s21, 1
    s_cmp_eq_u32 s20, 0
    s_cbranch_scc0 K1_PREP_C1
    s_lshl_b32 s23, s23, 4
    v_bfe_u32 v4, v2, 2, 1
    v_lshlrev_b32 v4, 5, v4
    v_and_b32 v5, 3, v2
    v_lshl_add_u32 v4, v5, 2, v4
    v_lshrrev_b32 v5, 3, v2
    v_add_u32 v4, v4, v5
    s_branch K1_PREP_C2
    K1_PREP_C1:
    v_lshlrev_b32 v4, 1, v2
    K1_PREP_C2:
    s_add_u32 s22, s22, s23
    v_add_u32 v4, s22, v4                       ; column
    v_lshlrev_b32 v5, 4, v1
    v_lshl_add_u32 v5, v3, 3, v5                ; 16s+8h
    s_movk_i32 s24, 256
    s_movk_i32 s25, 512
    s_cmp_eq_u32 s20, 2
    s_cbranch_scc0 K1_PREP_R
    v_and_b32 v5, 1, v1
    v_lshlrev_b32 v5, 6, v5
    v_lshl_add_u32 v5, v3, 4, v5
    v_lshrrev_b32 v6, 1, v1
    v_lshl_add_u32 v5, v6, 2, v5
    v_add_u32 v5, 128, v5
    s_movk_i32 s24, 8192
    s_movk_i32 s25, 256
    K1_PREP_R:
    v_lshlrev_b32 v5, 8, v5
    v_lshl_add_u32 v5, v4, 1, v5
    s_waitcnt lgkmcnt(0)
    s_cmp_eq_u32 s20, 0
    s_cselect_b32 s4, s46, s50
    s_cselect_b32 s5, s47, s51
    s_mov_b32 s6, 65540
    s_mov_b32 s7, 0x20000
    s_lshl_b32 s3, s3, 13
    s_add_u32 s3, s3, {WS_W}
    ''')
    srd(a, 8, 52, 's3', 8192)
    a('s_mov_b32 s26, 0')
    for x in range(4):
        a(f'''
        s_add_u32 s27, s26, s24
        buffer_load_ushort v{8 + x}, v5, s[4:7], s26 offen
        buffer_load_ushort v{12 + x}, v5, s[4:7], s27 offen
        s_add_u32 s26, s26, s25
        ''')
    a(f'''
    v_lshlrev_b32 v1, 4, v0
    s_waitcnt vmcnt(0)
    v_lshl_or_b32 v8, v12, 16, v8
    v_lshl_or_b32 v9, v13, 16, v9
    v_lshl_or_b32 v10, v14, 16, v10
    v_lshl_or_b32 v11, v15, 16, v11
    buffer_store_dwordx4 v[8:11], v1, s[8:11], 0 offen {st}
    s_endpgm
    ''')
    a('K1_CONST:')
    a(f'''
    v_readfirstlane_b32 s3, v0
    s_nop 3
    s_cmp_lt_u32 s3, 64
    s_cbranch_scc0 K1_END
    v_and_b32 v2, 31, v0                        ; j
    v_lshrrev_b32 v3, 5, v0                     ; h
    v_lshrrev_b32 v4, 4, v2
    v_lshlrev_b32 v4, 6, v4
    v_and_b32 v5, 1, v2
    v_lshl_add_u32 v4, v5, 5, v4
    v_bfe_u32 v5, v2, 3, 1
    v_lshl_add_u32 v4, v5, 4, v4
    v_bfe_u32 v5, v2, 1, 2
    v_add_u32 v4, v4, v5                        ; feature(0,j)
    v_lshlrev_b32 v4, 1, v4
    v_lshl_add_u32 v5, v3, 4, v4
    s_waitcnt lgkmcnt(0)
    ''')
    srd(a, 4, 46, 65536, 516)
    srd(a, 8, 48, 0, 260)
    srd(a, 12, 52, WS_W + 3 * 32768, 4096)
    a(f'''
    buffer_load_ushort v8, v5, s[4:7], 0 offen
    buffer_load_ushort v9, v5, s[4:7], 0 offen offset:256
    buffer_load_ushort v10, v5, s[4:7], 0 offen offset:8
    buffer_load_ushort v11, v5, s[4:7], 0 offen offset:264
    buffer_load_ushort v12, v4, s[8:11], 0 offen
    buffer_load_ushort v13, v4, s[8:11], 0 offen offset:8
    buffer_load_ushort v14, v4, s[8:11], 0 offen offset:16
    buffer_load_ushort v15, v4, s[8:11], 0 offen offset:24
    v_lshlrev_b32 v1, 4, v0
    v_lshlrev_b32 v6, 3, v3
    v_sub_u32 v6, v2, v6                        ; d = j - 8h
    v_and_b32 v7, 1, v2
    v_lshlrev_b32 v7, 4, v7
    v_mov_b32 v16, 0x3f80
    v_lshlrev_b32 v7, v7, v16
    v_ashrrev_i32 v6, 1, v6
    ''')
    for x in range(8):
        sel = x if x < 4 else x + 4
        a(f'''
        v_cmp_eq_u32 vcc, {sel}, v6
        s_nop 1
        v_cndmask_b32_e64 v{20 + x}, 0, v7, vcc
        ''')
    a(f'''
    buffer_store_dwordx4 v[20:23], v1, s[12:15], 0 offen {st}
    buffer_store_dwordx4 v[24:27], v1, s[12:15], 0 offen offset:1024 {st}
    s_mov_b32 s20, {NLOG2E:#x}
    s_mov_b32 s21, {NLN2:#x}
    s_waitcnt vmcnt(2)
    ''')
    for x in range(8):
        a(f'v_lshlrev_b32 v{8 + x}, 16, v{8 + x}')
    for x in range(4):
        a(f'v_mul_f32 v{8 + x}, s20, v{8 + x}')
        a(f'v_mul_f32 v{12 + x}, s21, v{12 + x}')
    a(f'''
    v_cvt_pk_bf16_f32 v28, v8, v9
    v_cvt_pk_bf16_f32 v30, v10, v11
    v_lshlrev_b32 v16, 16, v28
    v_and_b32 v17, 0xffff0000, v28
    v_lshlrev_b32 v18, 16, v30
    v_and_b32 v19, 0xffff0000, v30
    v_sub_f32 v8, v8, v16
    v_sub_f32 v9, v9, v17
    v_sub_f32 v10, v10, v18
    v_sub_f32 v11, v11, v19
    v_cvt_pk_bf16_f32 v29, v8, v9
    v_cvt_pk_bf16_f32 v31, v10, v11
    buffer_store_dwordx4 v[28:31], v1, s[12:15], 0 offen offset:2048 {st}
    buffer_store_dwordx4 v[12:15], v1, s[12:15], 0 offen offset:3072 {st}
    K1_END:
    s_endpgm
    ''')


RS = 528
ATAB = 0
MACC = NB * RS
STG = 2 * NB * RS
PACC = STG + 4096
SPARE = PACC + 1664
PD = 110112
CNT = PD + 1568
LIST = CNT + 128
CAP = 2048
SBUF = LIST + (CAP + 128) * 8
LDS_TOTAL = SBUF + 32768
HT2 = MACC
WH1L = HT2 + 25600
assert WH1L + 32768 <= PD and SPARE <= PD and LDS_TOTAL <= 163840

ACC, CC, D0, D1, EE, MM, GG = 0, 64, 96, 112, 128, 144, 160
SF, PP, I0, I1, QQ, WX = 192, 196, 200, 204, 208, 212
IDX, AD, AB = 216, 218, 222
vLidx, vLpair, vLaoff, vSr, vSw, vLrec, vStg, vFl, vFp, vGend = range(224, 234)
REC, POSQ, PD4, SN, SAn, SAo, PRn, ZZ = 234, 236, 238, 242, 244, 245, 246, 248
vLane, vX0, vX1, vX2, vT, vX4 = 250, 251, 252, 253, 254, 255
vX3 = AD
RCD = 234

sB, sW, sRound, sMode, sQ, sO, sMore = 24, 25, 26, 27, 28, 29, 30
sBeta, sEnd, sG, sGend, sT = 31, 32, 33, 34, 35
sRet = 54
sM0, sM1, sVal = 56, 58, 60
sMask = 64
sC0 = 80
sT0, sT1, sT2, sT3 = 82, 83, 84, 85
sN0 = 86
sNv = 87
sStamp = 88


def stamp(a, k):
    if OPT['stamps']:
        a(f's_memtime s[{sStamp}:{sStamp + 1}]')
        a('s_waitcnt lgkmcnt(0)')
        a(f'v_writelane_b32 v{vX4}, s{sStamp}, {k}')


def gen_k2(a):
    so = OPT['st_out']
    a('.p2align 8')
    a('.globl egnn_k2_kernel')
    a('.type egnn_k2_kernel,@function')
    a('egnn_k2_kernel:')
    a(f'''
    s_cmp_lt_u32 s2, 256
    s_cbranch_scc1 K2_GO
    s_endpgm
    K2_GO:
    s_load_dwordx4 s[36:39], s[0:1], 0
    s_load_dwordx2 s[40:41], s[0:1], 64
    s_load_dwordx2 s[42:43], s[0:1], 80
    ''')
    if OPT['stamps']:
        a(f'v_mov_b32 v{vX4}, 0')
        a(f's_memtime s[{sStamp + 2}:{sStamp + 3}]')
    a(f'''
    v_mov_b32 v{vT}, v0
    v_lshrrev_b32 v1, 6, v0
    v_and_b32 v{vLane}, 63, v0
    v_readfirstlane_b32 s{sW}, v1
    s_and_b32 s3, s2, 7
    s_lshl_b32 s3, s3, 5
    s_lshr_b32 s{sB}, s2, 3
    s_add_u32 s{sB}, s{sB}, s3
    s_mul_i32 s{sN0}, s{sB}, {NB}
    s_mov_b32 s{sRound}, 0
    s_mov_b32 s{sMode}, 0
    s_mov_b32 s{sQ}, 0
    s_mov_b32 s{sO}, 0
    s_sub_u32 s3, {N}, s{sN0}
    s_min_u32 s3, s3, {NB}
    s_lshl_b32 s{sT0}, s{sN0}, 8
    s_lshl_b32 s{sT1}, s3, 8
    s_mul_i32 s{sT2}, s{sN0}, 6
    s_add_u32 s{sT2}, s{sT2}, {N * 256}
    s_mul_i32 s{sT3}, s3, 6
    s_add_u32 s{sT3}, s{sT3}, 2
    s_mov_b32 s{sNv}, s3
    s_waitcnt lgkmcnt(0)
    ''')
    if OPT['stamps']:
        a(f'v_writelane_b32 v{vX4}, s{sStamp + 2}, 0')
    srd(a, 12, 42, WS_REC, WS_END - WS_REC)
    srd(a, 4, 42, 0, N, stride=256)
    srd(a, 8, 38, 0, N * 6)
    srd(a, 16, 36, f's{sT0}', f's{sT1}')
    srd(a, 20, 40, f's{sT0}', f's{sT1}')
    srd(a, 44, 40, f's{sT2}', f's{sT3}')
    a('K2_ROUND:')
    EN = SF
    a(f'''
    v_lshrrev_b32 v1, 4, v{vT}
    v_lshlrev_b32 v2, 10, v1
    s_lshl_b32 s3, s{sB}, 2
    s_add_u32 s3, s3, {WS_OFF - WS_REC}
    ''')
    for i in range(4):
        a(f'buffer_load_dword v{EN + i}, v2, s[12:15], s3 offen')
        if i < 3:
            a(f's_add_u32 s3, s3, 32768')
    a(f'''
    s_cmp_eq_u32 s{sRound}, 0
    s_cbranch_scc0 K2_NOBULK
    ''')
    W1F = 128
    a(f'''
    v_lshrrev_b32 v3, 4, v{vLane}
    v_and_b32 v4, 15, v{vLane}
    s_and_b32 s3, s{sW}, 3
    s_lshl_b32 s{sT1}, s3, 2
    v_add_u32 v5, s{sT1}, v3
    v_xor_b32 v5, v5, v4
    v_lshlrev_b32 v5, 4, v5
    v_lshl_add_u32 v5, v3, 8, v5
    v_lshlrev_b32 v6, 4, v{vLane}
    s_lshl_b32 s{sT0}, s{sW}, 10
    s_add_u32 m0, s{sT0}, {HT2}
    s_lshl_b32 s3, s3, 13
    s_add_u32 s3, s3, {WS_W - WS_REC}
    buffer_load_dwordx4 v5, s[16:19], s{sT0} offen lds
    ''')
    for i in (1, 2):
        a(f'''
        s_add_u32 m0, s{sT0}, {HT2 + 8192 * i}
        s_add_u32 s{sT1}, s{sT0}, {8192 * i}
        buffer_load_dwordx4 v5, s[16:19], s{sT1} offen lds
        ''')
    a(f'''
    v_xor_b32 v7, v3, v4
    v_lshlrev_b32 v7, 4, v7
    v_lshl_add_u32 v7, v3, 8, v7
    s_mov_b32 m0, {HT2 + 24576}
    s_movk_i32 s{sT1}, 24576
    buffer_load_dwordx4 v7, s[16:19], s{sT1} offen lds
    ''')
    for s in range(8):
        if s == 4:
            a('s_add_u32 s3, s3, 4096')
        a(f'buffer_load_dwordx4 {vr(W1F + 4 * s, 4)}, v6, s[12:15], s3 offen offset:{1024 * (s & 3)}')
    a(f'''
    s_lshl_b32 s{sT0}, s{sW}, 12
    s_add_u32 m0, s{sT0}, {WH1L}
    s_add_u32 s{sT0}, s{sT0}, {WS_W - WS_REC + 32768}
    ''')
    for i in range(4):
        a(f'buffer_load_dwordx4 v6, s[12:15], s{sT0} offen offset:{1024 * i} lds')
    a(f's_mov_b32 s3, {WS_W - WS_REC + 3 * 32768}')
    for i in range(4):
        a(f'buffer_load_dwordx4 {vr(I0 + 4 * i, 4)}, v6, s[12:15], s3 offen offset:{1024 * i}')
    a(f'''
    v_add_u32 v7, s{sN0}, v{vT}
    v_mul_u32_u24 v7, 6, v7
    v_and_b32 v7, -4, v7
    buffer_load_dwordx2 v[{vX1}:{vX2}], v7, s[8:11], 0 offen
    ''')
    NBULK = 4 + 8 + 4 + 4 + 1
    a(f'''
    K2_NOBULK:
    v_and_b32 v8, 31, v{vLane}                  ; j
    v_lshrrev_b32 v9, 5, v{vLane}               ; h
    v_and_b32 v10, 3, v{vLane}                  ; c
    v_lshlrev_b32 v{IDX + 1}, 4, v10
    v_lshl_add_u32 v{IDX + 1}, v9, 6, v{IDX + 1}
    v_lshlrev_b32 v{AB}, 4, v8
    v_mov_b32 v{AB + 1}, v{AB}
    v_bfe_u32 v11, v{vLane}, 2, 1
    v_bfe_u32 v12, v{vLane}, 3, 2
    v_lshl_add_u32 v{vX0}, v11, 2, v12          ; lambda(e)
    s_lshl_b32 s3, s{sW}, 9
    s_add_u32 s3, s3, {STG}
    v_lshl_add_u32 v{vLpair}, v{vX0}, 2, s3
    v_lshl_add_u32 v{vStg}, v{vLane}, 2, s3
    s_add_u32 s3, s3, 256
    v_lshl_add_u32 v{vLaoff}, v9, 4, s3
    s_lshl_b32 s3, s{sW}, 12
    s_add_u32 s3, s3, {SBUF}
    v_lshl_add_u32 v{vSw}, v{vLane}, 6, s3
    v_bfe_u32 v11, v{vLane}, 2, 2               ; r
    v_lshl_add_u32 v11, v9, 2, v11
    v_lshl_add_u32 v{vSr}, v11, 6, s3
    v_bfe_u32 v11, v{vLane}, 4, 1
    v_lshl_add_u32 v{vSr}, v11, 5, v{vSr}
    v_lshl_add_u32 v{vSr}, v10, 3, v{vSr}
    v_mul_u32_u24 v{vFl}, {RS}, v9
    v_lshl_add_u32 v{vFl}, v8, 2, v{vFl}
    v_add_u32 v{vFl}, {MACC}, v{vFl}
    v_bfe_u32 v12, v{vLane}, 3, 1               ; p
    v_lshl_add_u32 v12, v12, 1, v11
    v_lshl_add_u32 v12, v12, 1, v9
    v_bfe_u32 v11, v{vLane}, 2, 1
    v_lshlrev_b32 v11, 2, v11
    v_lshl_add_u32 v{vFp}, v12, 4, v11
    v_add_u32 v{vFp}, {PACC}, v{vFp}
    v_lshlrev_b32 v11, 1, v9
    v_cmp_eq_u32 s[{sM0}:{sM0 + 1}], v10, v11
    v_add_u32 v11, 1, v11
    v_cmp_eq_u32 s[{sM1}:{sM1 + 1}], v10, v11
    ''')
    a(f'''
    v_mov_b32 v12, 0
    v_mov_b32 v13, 0
    v_mov_b32 v14, 0
    v_mov_b32 v15, 0
    v_bfrev_b32 v16, 1
    v_mov_b32 v17, 0
    v_bfrev_b32 v18, 1
    v_mov_b32 v19, 0
    v_lshlrev_b32 v3, 4, v{vT}
    v_add_u32 v4, {LIST}, v3
    v_add_u32 v3, {SBUF}, v3
    ds_write_b128 v4, v[16:19]
    ds_write_b128 v4, v[16:19] offset:8192
    ds_write_b128 v3, v[12:15]
    ds_write_b128 v3, v[12:15] offset:8192
    ds_write_b128 v3, v[12:15] offset:16384
    ds_write_b128 v3, v[12:15] offset:24576
    v_lshlrev_b32 v3, 4, v{vLane}
    v_add_u32 v3, {LIST + 16384}, v3
    ds_write_b128 v3, v[16:19]
    v_and_b32 v3, 31, v{vLane}
    v_lshlrev_b32 v3, 2, v3
    v_add_u32 v3, {CNT}, v3
    ds_write_b32 v3, v12
    v_and_b32 v3, 15, v{vT}
    v_lshl_add_u32 v3, v3, 1, s{sO}             ; o + 2*(t&15)
    v_mul_u32_u24 v4, {CHB}, v1
    v_lshl_add_u32 v4, v3, 3, v4
    v_bfrev_b32 v5, 1
    s_cmp_eq_u32 s{sRound}, 0
    s_cbranch_scc1 K2_W0
    s_waitcnt vmcnt(0)
    K2_W0:
    s_waitcnt vmcnt({NBULK})
    ''')
    stamp(a, 1)
    for i in range(4):
        a(f'''
        v_lshrrev_b32 v{8 + i}, 16, v{EN + i}
        v_and_b32 v{EN + i}, 0xffff, v{EN + i}
        v_sub_u32 v{12 + i}, v{8 + i}, v3
        v_lshl_add_u32 v{EN + i}, v{EN + i}, 3, v4
        v_cmp_lt_i32 s[{sMask + 4 * i}:{sMask + 4 * i + 1}], 0, v{12 + i}
        v_cmp_lt_i32 s[{sMask + 4 * i + 2}:{sMask + 4 * i + 3}], 1, v{12 + i}
        ''')
    a(f'''
    s_cmp_eq_u32 s{sMode}, 0
    s_cbranch_scc1 K2_ALLQ
    ''')
    for i in range(4):
        a(f'''
        s_cmp_eq_u32 s{sQ}, {i}
        s_cselect_b64 s[{sMask + 4 * i}:{sMask + 4 * i + 1}], s[{sMask + 4 * i}:{sMask + 4 * i + 1}], 0
        s_cselect_b64 s[{sMask + 4 * i + 2}:{sMask + 4 * i + 3}], s[{sMask + 4 * i + 2}:{sMask + 4 * i + 3}], 0
        ''')
    a('K2_ALLQ:')
    a('s_mov_b32 s3, 0')
    for i in range(4):
        a(f'''
        v_cndmask_b32_e64 v{EN + i}, v5, v{EN + i}, s[{sMask + 4 * i}:{sMask + 4 * i + 1}]
        buffer_load_dwordx4 {vr(RCD + 4 * i, 4)}, v{EN + i}, s[12:15], s3 offen
        ''')
        if i < 3:
            a(f's_add_u32 s3, s3, {32 * CHB}')
    a(f'''
    v_max3_u32 v8, v8, v9, v10
    v_max_u32 v{vX3}, v8, v11
    s_waitcnt vmcnt(4) lgkmcnt(0)
    s_barrier
    ''')
    stamp(a, 2)
    a(f'''
    s_cmp_eq_u32 s{sRound}, 0
    s_cbranch_scc0 K2_NOGEMM
    ''')
    H0, H1, AO, WB = 0, 32, 96, 160
    T = SF
    a(f'''
    v_add_u32 v{T}, s{sN0}, v{vT}
    v_lshlrev_b32 v{T}, 4, v{T}
    v_alignbit_b32 v{T + 1}, v{vX2}, v{vX1}, v{T}
    v_lshrrev_b32 v{T + 6}, v{T}, v{vX2}
    v_lshlrev_b32 v{T + 4}, 16, v{T + 1}
    v_and_b32 v{T + 5}, 0xffff0000, v{T + 1}
    v_lshlrev_b32 v{T + 6}, 16, v{T + 6}
    v_mov_b32 v{T + 7}, 0
    v_lshlrev_b32 v{T}, 4, v{vT}
    v_add_u32 v{T}, {PD}, v{T}
    v_cmp_gt_u32 vcc, {NB}, v{vT}
    s_and_saveexec_b64 s[{sT0}:{sT0 + 1}], vcc
    ds_write_b128 v{T}, {vr(T + 4, 4)}
    s_mov_b64 exec, s[{sT0}:{sT0 + 1}]
    v_and_b32 v{T}, 31, v{vLane}                ; i
    v_lshrrev_b32 v{T + 1}, 5, v{vLane}         ; h
    v_and_b32 v{T + 2}, 15, v{vLane}
    v_xor_b32 v{T + 2}, v{T + 2}, v{T + 1}
    v_lshlrev_b32 v{T + 2}, 4, v{T + 2}
    v_lshl_add_u32 v{T + 2}, v{T}, 8, v{T + 2}
    s_lshr_b32 s3, s{sW}, 1                     ; nt
    s_lshl_b32 s{sT0}, s3, 13
    v_add_u32 v{T + 2}, s{sT0}, v{T + 2}
    s_and_b32 s{sT0}, s{sW}, 1
    s_lshl_b32 s{sT0}, s{sT0}, 14
    s_add_u32 s{sT0}, s{sT0}, {WH1L}
    v_lshl_add_u32 v{T + 3}, v{vLane}, 4, s{sT0}
    ''')
    for s in range(8):
        if s:
            a(f'v_xor_b32 v{T + 4}, {32 * s}, v{T + 2}')
        a(f'ds_read_b128 {vr(H0 + 4 * s, 4)}, v{T + 4 if s else T + 2} offset:{HT2}')
        a(f'v_xor_b32 v{T + 5}, {8192 + 32 * s}, v{T + 2}')
        a(f'ds_read_b128 {vr(H1 + 4 * s, 4)}, v{T + 5} offset:{HT2}')
        if s >= 4:
            k = s - 4
            a(f's_waitcnt lgkmcnt(8)')
            a(mfma(AO, W1F + 4 * k, H0 + 4 * k, '0' if k == 0 else None))
            a(mfma(AO + 16, W1F + 4 * k, H1 + 4 * k, '0' if k == 0 else None))
    for k in range(4, 8):
        a(f'ds_read_b128 {vr(WB + 8 * (k - 4), 4)}, v{T + 3} offset:{2048 * (k - 4)}')
        a(f'ds_read_b128 {vr(WB + 8 * (k - 4) + 4, 4)}, v{T + 3} offset:{2048 * (k - 4) + 1024}')
        a(f's_waitcnt lgkmcnt(8)')
        a(mfma(AO, W1F + 4 * k, H0 + 4 * k))
        a(mfma(AO + 16, W1F + 4 * k, H1 + 4 * k))
    for s in range(8):
        a(f'ds_read_b128 {vr(W1F + 4 * s, 4)}, v{T + 3} offset:{8192 + 1024 * s}')
        a(f's_waitcnt lgkmcnt(8)')
        a(mfma(CC, H0 + 4 * s, WB + 4 * s, '0' if s == 0 else None))
    a(f'''
    s_mov_b32 s{sC0}, {NLOG2E:#x}
    s_mov_b32 s{sC0 + 1}, {NLOG2E:#x}
    s_lshl_b32 s{sT0}, s3, 5
    v_add_u32 v{T + 4}, s{sT0}, v{T}
    v_xor_b32 v{T + 5}, 32, v{T + 4}
    v_mul_u32_u24 v{T + 6}, {RS}, v{T + 4}
    v_mul_u32_u24 v{T + 7}, {RS}, v{T + 5}
    s_and_b32 s3, s{sW}, 3
    s_lshl_b32 s3, s3, 7
    v_lshl_add_u32 v{T + 1}, v{T + 1}, 4, s3
    v_add_u32 v{T + 6}, v{T + 6}, v{T + 1}
    v_add_u32 v{T + 7}, v{T + 7}, v{T + 1}
    s_movk_i32 s3, {NB}
    v_cmp_gt_u32 s[{sT0}:{sT0 + 1}], s3, v{T + 4}
    v_cmp_gt_u32 s[{sT2}:{sT2 + 1}], s3, v{T + 5}
    ''')
    for s in range(8):
        a(f's_waitcnt lgkmcnt({7 - s})')
        a(mfma(CC + 16, H0 + 4 * s, W1F + 4 * s, '0' if s == 0 else None))
    for r in range(0, 32, 2):
        a(f'v_pk_mul_f32 {vr(AO + r, 2)}, {vr(AO + r, 2)}, s[{sC0}:{sC0 + 1}]')
    a(f's_mov_b64 exec, s[{sT0}:{sT0 + 1}]')
    for jj in range(4):
        a(f'ds_write_b128 v{T + 6}, {vr(AO + 4 * jj, 4)} offset:{ATAB + 32 * jj}')
    a(f's_mov_b64 exec, s[{sT2}:{sT2 + 1}]')
    for jj in range(4):
        a(f'ds_write_b128 v{T + 7}, {vr(AO + 16 + 4 * jj, 4)} offset:{ATAB + 32 * jj}')
    a('s_mov_b64 exec, -1')
    for r in range(0, 32, 2):
        a(f'v_pk_mul_f32 {vr(CC + r, 2)}, {vr(CC + r, 2)}, s[{sC0}:{sC0 + 1}]')
    a('K2_NOGEMM:')
    stamp(a, 3)
    G4, RK = 0, 8
    a(f'''
    v_mov_b32 v16, 1
    v_mov_b32 v17, {CNT}
    s_add_u32 s3, s{sO}, 32
    v_cmp_lt_u32 vcc, s3, v{vX3}
    s_and_saveexec_b64 s[{sT0}:{sT0 + 1}], vcc
    ds_write_b32 v17, v16 offset:64
    s_mov_b64 exec, -1
    s_waitcnt vmcnt(0)
    ''')
    for x in range(8):
        a(f'v_lshrrev_b32 v{G4 + x}, 17, v{RCD + 2 * x}')
        a(f'v_and_b32 v{G4 + x}, 0x3c, v{G4 + x}')
        a(f'v_add_u32 v{24 + x}, {CNT}, v{G4 + x}')
    for x in range(8):
        a(f's_mov_b64 exec, s[{sMask + 2 * x}:{sMask + 2 * x + 1}]')
        a(f'ds_add_rtn_u32 v{RK + x}, v{24 + x}, v16')
    a(f'''
    s_mov_b64 exec, -1
    v_and_b32 v18, 15, v{vLane}
    v_lshl_add_u32 v18, v18, 2, v17
    s_waitcnt lgkmcnt(0)
    s_barrier
    ds_read_b32 v19, v18
    ds_read_b32 v20, v17 offset:64
    s_waitcnt lgkmcnt(0)
    v_add_u32 v19, 15, v19
    v_lshrrev_b32 v19, 4, v19
    v_readfirstlane_b32 s{sMore}, v20
    v_mov_b32 v{vGend}, v19
    s_nop 1
    v_add_u32_dpp v{vGend}, v{vGend}, v{vGend} row_shr:1 row_mask:0xf bank_mask:0xf
    s_nop 1
    v_add_u32_dpp v{vGend}, v{vGend}, v{vGend} row_shr:2 row_mask:0xf bank_mask:0xf
    s_nop 1
    v_add_u32_dpp v{vGend}, v{vGend}, v{vGend} row_shr:4 row_mask:0xf bank_mask:0xf
    s_nop 1
    v_add_u32_dpp v{vGend}, v{vGend}, v{vGend} row_shr:8 row_mask:0xf bank_mask:0xf
    v_sub_u32 v19, v{vGend}, v19
    v_readlane_b32 s{sT}, v{vGend}, 15
    v_lshlrev_b32 v19, 7, v19
    v_add_u32 v19, {LIST}, v19
    s_cmp_gt_u32 s{sT}, {CAP // 16}
    s_cbranch_scc1 K2_OVER
    ''')
    for x in range(8):
        a(f'ds_bpermute_b32 v{24 + x}, v{G4 + x}, v19')
    a(f'''
    s_lshr_b32 s{sT0}, s{sT}, 3
    s_and_b32 s{sT1}, s{sT}, 7
    s_mul_i32 s{sBeta}, s{sT0}, s{sW}
    s_min_u32 s{sT2}, s{sW}, s{sT1}
    s_add_u32 s{sBeta}, s{sBeta}, s{sT2}
    s_cmp_lt_u32 s{sW}, s{sT1}
    s_addc_u32 s{sEnd}, s{sBeta}, s{sT0}
    s_lshl_b32 s3, s{sBeta}, 7
    s_add_u32 s3, s3, {LIST}
    v_lshl_add_u32 v{vLidx}, v{vX0}, 3, s3
    v_lshl_add_u32 v{vLrec}, v{vLane}, 3, s3
    v_cmp_ge_u32 vcc, s{sBeta}, v{vGend}
    s_and_b32 vcc_lo, vcc_lo, 0x1fff
    s_bcnt1_i32_b32 s{sG}, vcc_lo
    s_waitcnt lgkmcnt(0)
    ''')
    for x in range(8):
        a(f'v_lshl_add_u32 v{24 + x}, v{RK + x}, 3, v{24 + x}')
    a(f'v_readlane_b32 s{sGend}, v{vGend}, s{sG}')
    for x in range(8):
        a(f's_mov_b64 exec, s[{sMask + 2 * x}:{sMask + 2 * x + 1}]')
        a(f'ds_write_b64 v{24 + x}, {vr(RCD + 2 * x, 2)}')
    a(f'''
    s_mov_b64 exec, -1
    s_waitcnt lgkmcnt(0)
    s_barrier
    ''')
    stamp(a, 4)
    a(f'''
    ds_read_b64 {vr(REC, 2)}, v{vLrec}
    ds_read_u16 v0, v{vLidx}
    ds_read_u16 v2, v{vLidx} offset:64
    ds_read_u16 v4, v{vLidx} offset:128
    ds_read_u16 v6, v{vLidx} offset:192
    ds_read_u16 v{IDX}, v{vLidx} offset:256
    v_mov_b32 v1, v{IDX + 1}
    v_mov_b32 v3, v{IDX + 1}
    v_mov_b32 v5, v{IDX + 1}
    v_mov_b32 v7, v{IDX + 1}
    s_add_u32 s3, s{sBeta}, 1
    s_cmp_lt_u32 s{sBeta}, s{sEnd}
    s_cselect_b32 s6, {N}, 0
    s_waitcnt lgkmcnt(5)
    ''')
    stage1(a)
    a('s_waitcnt lgkmcnt(1)')
    for t in range(4):
        if t == 2:
            a(f's_cmp_lt_u32 s3, s{sEnd}')
            a(f's_cselect_b32 s6, {N}, 0')
        a(f'buffer_load_dwordx4 {vr(GG + 8 * t, 4)}, v[{2 * t}:{2 * t + 1}], s[4:7], 0 idxen offen')
        a(f'buffer_load_dwordx4 {vr(GG + 8 * t + 4, 4)}, v[{2 * t}:{2 * t + 1}], s[4:7], 0 idxen offen offset:128')
    a(f'''
    v_mov_b64 {vr(ZZ, 2)}, 0
    v_mov_b64 v[8:9], 0
    v_mov_b64 v[10:11], 0
    s_cmp_eq_u32 s{sRound}, 0
    s_cbranch_scc0 K2_NOZERO
    v_lshlrev_b32 v12, 4, v{vT}
    v_add_u32 v12, {MACC}, v12
    ''')
    nz = (SPARE - MACC) // 16
    for i in range(nz // 512):
        a(f'ds_write_b128 v12, v[8:11] offset:{8192 * i}')
    a(f'''
    s_movk_i32 s3, {nz % 512}
    v_cmp_gt_u32 vcc, s3, v{vT}
    s_and_saveexec_b64 s[{sT0}:{sT0 + 1}], vcc
    ds_write_b128 v12, v[8:11] offset:{8192 * (nz // 512)}
    s_mov_b64 exec, -1
    K2_NOZERO:
    ''')
    a(mfma(16, 8, 8, '0'))
    a(mfma(32, 8, 8, '0'))
    a(mfma(48, 8, 8, '0'))
    a(mfma(MM, 8, 8, '0'))
    a(f'''
    v_mov_b64 {vr(SF, 2)}, 0
    v_mov_b64 {vr(SF + 2, 2)}, 0
    v_mov_b64 {vr(PP, 2)}, 0
    v_mov_b64 {vr(PP + 2, 2)}, 0
    v_mov_b32 v{SAo}, v{vSw}
    s_waitcnt lgkmcnt(0)
    s_barrier
    ''')
    a(mfma(0, SF, SF, '0'))
    a(f'''
    s_cmp_lt_u32 s{sBeta}, s{sEnd}
    s_cbranch_scc0 K2_WAVE_DONE
    s_waitcnt vmcnt(8)
    ''')
    stamp(a, 5)
    stage2(a)
    stage_w_aoff(a)
    stage_w_pair(a)
    stage_w_s(a)
    a(f'''
    ds_read_b128 {vr(AD, 4)}, v{vLaoff}
    s_mov_b64 exec, s[{sM0}:{sM0 + 1}]
    ds_read2_b32 {vr(PP, 2)}, v{vLpair} offset0:0 offset1:0
    s_mov_b64 exec, s[{sM1}:{sM1 + 1}]
    ds_read2_b32 {vr(PP + 2, 2)}, v{vLpair} offset0:0 offset1:0
    s_mov_b64 exec, -1
    s_waitcnt lgkmcnt(2)
    v_lshl_add_u64 {vr(AD, 2)}, {vr(AD, 2)}, 0, {vr(AB, 2)}
    v_lshl_add_u64 {vr(AD + 2, 2)}, {vr(AD + 2, 2)}, 0, {vr(AB, 2)}
    ''')
    for jj in range(4):
        a(f'ds_read_b128 {vr(D0 + 4 * jj, 4)}, v{AD + jj}')
    a(f'''
    ds_read_b128 {vr(AD, 4)}, v{vLaoff} offset:32
    s_waitcnt vmcnt(6) lgkmcnt(0)
    ''')
    a(mfma(D0, PP, QQ))
    a(mfma(D0, GG, I0))
    a(mfma(D0, GG + 4, I1))
    a(f'''
    v_lshl_add_u64 {vr(AD, 2)}, {vr(AD, 2)}, 0, {vr(AB, 2)}
    v_lshl_add_u64 {vr(AD + 2, 2)}, {vr(AD + 2, 2)}, 0, {vr(AB, 2)}
    s_nop 7
    ''')
    stamp(a, 6)
    a('.p2align 6')
    a('K2_LOOP:')
    for tau in range(8):
        slot(a, tau)
    a('s_branch K2_LOOP')
    a('K2_DRAIN:')
    a('s_nop 0')
    for c in range(4):
        a(mfma(ACC + 16 * c, SF, MM + 4 * c))
    a('s_nop 11')
    a(f's_call_b64 s[{sRet}:{sRet + 1}], K2_FLUSH')
    a('K2_WAVE_DONE:')
    stamp(a, 7)
    a(f'''
    s_cmp_eq_u32 s{sMode}, 0
    s_cbranch_scc1 K2_NQ
    s_cmp_lt_u32 s{sQ}, 3
    s_cbranch_scc0 K2_NQ
    s_add_u32 s{sQ}, s{sQ}, 1
    s_branch K2_NEXT
    K2_NQ:
    s_cmp_eq_u32 s{sMore}, 0
    s_cbranch_scc1 K2_EPI
    s_mov_b32 s{sMode}, 0
    s_add_u32 s{sO}, s{sO}, 32
    K2_NEXT:
    s_mov_b32 s{sRound}, 1
    s_waitcnt vmcnt(0) lgkmcnt(0)
    s_barrier
    s_branch K2_ROUND
    ''')
    a(f'''
    K2_OVER:
    s_mov_b32 s{sMode}, 1
    s_mov_b32 s{sQ}, 0
    s_cmp_eq_u32 s{sRound}, 0
    s_cbranch_scc0 K2_NEXT
    v_mov_b64 v[8:9], 0
    v_mov_b64 v[10:11], 0
    v_lshlrev_b32 v12, 4, v{vT}
    v_add_u32 v12, {MACC}, v12
    ''')
    for i in range(nz // 512):
        a(f'ds_write_b128 v12, v[8:11] offset:{8192 * i}')
    a(f'''
    s_movk_i32 s3, {nz % 512}
    v_cmp_gt_u32 vcc, s3, v{vT}
    s_and_saveexec_b64 s[{sT0}:{sT0 + 1}], vcc
    ds_write_b128 v12, v[8:11] offset:{8192 * (nz // 512)}
    s_mov_b64 exec, -1
    s_branch K2_NEXT
    ''')
    flush(a)
    HR, MB, WF, HL, HH = 192, 96, 128, 128, 144
    a('K2_EPI:')
    a(f'''
    v_lshlrev_b32 v{vX0}, 4, v{vLane}
    s_lshl_b32 s{sT0}, s{sW}, 12
    s_add_u32 m0, s{sT0}, {SBUF}
    s_add_u32 s{sT0}, s{sT0}, {WS_W - WS_REC + 65536}
    v_and_b32 v{vX1}, 31, v{vLane}
    v_lshrrev_b32 v{vX2}, 5, v{vLane}
    s_waitcnt lgkmcnt(0)
    ''')
    for i in range(4):
        a(f'buffer_load_dwordx4 v{vX0}, s[12:15], s{sT0} offen offset:{1024 * i} lds')
    a(f'''
    v_lshlrev_b32 v{vX3}, 10, v{vX2}
    v_lshl_add_u32 v{vX3}, v{vX1}, 2, v{vX3}
    s_lshr_b32 s3, s{sW}, 1
    s_lshl_b32 s{sT0}, s3, 13
    s_and_b32 s{sT2}, s{sW}, 1
    s_lshl_b32 s{sT1}, s{sT2}, 7
    s_add_u32 s{sT0}, s{sT0}, s{sT1}
    s_add_u32 s{sT1}, s{sT0}, 4096
    ''')
    for r in range(16):
        jj, ii = r >> 2, r & 3
        a(f'buffer_load_dword v{HR + r}, v{vX3}, s[16:19], s{sT0 if jj < 2 else sT1} offen offset:{(jj & 1) * 2048 + ii * 256}')
    a(f'''
    s_lshl_b32 s3, s3, 5
    v_add_u32 v{vX1}, s3, v{vX1}
    v_mul_u32_u24 v{vX1}, {RS}, v{vX1}
    v_lshl_add_u32 v{vX1}, v{vX2}, 5, v{vX1}
    s_lshl_b32 s{sT2}, s{sT2}, 14
    s_add_u32 s{sT2}, s{sT2}, {SBUF}
    v_add_u32 v{vX0}, s{sT2}, v{vX0}
    s_mov_b32 s{sC0}, {NLN2:#x}
    s_mov_b32 s{sC0 + 1}, {NLN2:#x}
    s_waitcnt vmcnt(16)
    s_barrier
    ''')
    stamp(a, 8)
    for s in range(8):
        a(f'ds_read_b128 {vr(8 * s, 4)}, v{vX1} offset:{MACC + 64 * s}')
        a(f'ds_read_b128 {vr(8 * s + 4, 4)}, v{vX1} offset:{MACC + 64 * s + 16}')
        a(f'ds_read_b128 {vr(WF + 8 * s, 4)}, v{vX0} offset:{1024 * s}')
        a(f'ds_read_b128 {vr(WF + 8 * s + 4, 4)}, v{vX0} offset:{8192 + 1024 * s}')
        if s >= 2:
            epi_step(a, s - 2, 8, MB, WF)
    epi_step(a, 6, 4, MB, WF)
    epi_step(a, 7, 0, MB, WF)
    a(f'''
    s_cmp_lt_u32 s{sW}, 2
    s_cbranch_scc0 K2_NOPOS
    v_lshlrev_b32 v0, 4, v{vT}
    v_add_u32 v1, {PD}, v0
    v_add_u32 v0, {PACC}, v0
    ds_read_b128 v[4:7], v1
    ds_read_b128 v[8:11], v0
    v_mul_u32_u24 v2, 6, v{vT}
    s_waitcnt lgkmcnt(0)
    v_add_f32 v4, v4, v8
    v_add_f32 v5, v5, v9
    v_add_f32 v6, v6, v10
    v_cvt_pk_bf16_f32 v4, v4, v5
    v_cvt_pk_bf16_f32 v6, v6, v6
    v_cmp_gt_u32 vcc, s{sNv}, v{vT}
    s_and_saveexec_b64 s[{sT2}:{sT2 + 1}], vcc
    s_cbranch_execz K2_NOPOS1
    buffer_store_short v4, v2, s[44:47], 0 offen {so}
    buffer_store_short_d16_hi v4, v2, s[44:47], 0 offen offset:2 {so}
    buffer_store_short v6, v2, s[44:47], 0 offen offset:4 {so}
    s_mov_b64 exec, -1
    s_waitcnt vmcnt(3)
    s_branch K2_HROK
    K2_NOPOS1:
    s_mov_b64 exec, -1
    K2_NOPOS:
    s_waitcnt vmcnt(0)
    K2_HROK:
    ''')
    for r in range(16):
        a(f'v_lshlrev_b32 v{HL + r}, 16, v{HR + r}')
        a(f'v_and_b32 v{HH + r}, 0xffff0000, v{HR + r}')
    for u in range(2):
        for r in range(16):
            a(f'v_exp_f32 v{16 * u + r}, v{CC + 16 * u + r}')
        for r in range(0, 16, 2):
            a(f'v_pk_add_f32 {vr(16 * u + r, 2)}, {vr(16 * u + r, 2)}, 1.0 op_sel_hi:[1,0]')
        for r in range(16):
            a(f'v_rcp_f32 v{16 * u + r}, v{16 * u + r}')
        for r in range(0, 16, 2):
            a(f'v_pk_mul_f32 {vr(16 * u + r, 2)}, {vr(16 * u + r, 2)}, {vr(CC + 16 * u + r, 2)}')
        for r in range(0, 16, 2):
            a(f'v_pk_fma_f32 {vr(16 * u + r, 2)}, {vr(16 * u + r, 2)}, s[{sC0}:{sC0 + 1}], {vr((HL, HH)[u] + r, 2)}')
    for r in range(16):
        jj, ii = r >> 2, r & 3
        a(f'v_cvt_pk_bf16_f32 v{32 + r}, v{r}, v{16 + r}')
        a(f'buffer_store_dword v{32 + r}, v{vX3}, s[20:23], s{sT0 if jj < 2 else sT1} offen offset:{(jj & 1) * 2048 + ii * 256} {so}')
    if OPT['stamps']:
        stamp(a, 9)
        a('s_waitcnt vmcnt(0)')
        stamp(a, 10)
        a(f'''
        s_lshl_b32 s3, s2, 3
        s_add_u32 s3, s3, s{sW}
        s_lshl_b32 s3, s3, 8
        s_add_u32 s3, s3, {0x1000000}
        ''')
        srd(a, 12, 42, 's3', 256)
        a(f'''
        v_lshlrev_b32 v0, 2, v{vLane}
        buffer_store_dword v{vX4}, v0, s[12:15], 0 offen
        ''')
    a('s_endpgm')


def epi_step(a, s, wait, MB, WF):
    a(f's_waitcnt lgkmcnt({wait})')
    for x in range(4):
        a(f'v_cvt_pk_bf16_f32 v{MB + 4 * s + x}, v{8 * s + 2 * x}, v{8 * s + 2 * x + 1}')
    a('s_nop 1')
    a(mfma(CC, MB + 4 * s, WF + 8 * s))
    a(mfma(CC + 16, MB + 4 * s, WF + 8 * s + 4))


def stage1(a):
    t = EE
    a(f'''
    v_and_b32 v{t}, 0xffff, v{REC}
    v_bfe_u32 v{t + 1}, v{REC}, 16, 7
    v_mul_u32_u24 v{t}, 6, v{t}
    v_lshlrev_b32 v{t + 1}, 4, v{t + 1}
    v_and_b32 v{t}, -4, v{t}
    v_add_u32 v{t + 1}, {PD}, v{t + 1}
    buffer_load_dwordx2 {vr(POSQ, 2)}, v{t}, s[8:11], 0 offen
    ds_read_b128 {vr(PD4, 4)}, v{t + 1}
    ''')


def stage2(a):
    t = EE
    a(f'''
    v_lshlrev_b32 v{t}, 4, v{REC}
    v_cmp_lt_i32 s[{sVal}:{sVal + 1}], -1, v{REC}
    v_alignbit_b32 v{t + 1}, v{POSQ + 1}, v{POSQ}, v{t}
    v_lshrrev_b32 v{t + 2}, v{t}, v{POSQ + 1}
    v_lshlrev_b32 v{t + 3}, 16, v{t + 1}
    v_and_b32 v{t + 4}, 0xffff0000, v{t + 1}
    v_lshlrev_b32 v{t + 5}, 16, v{t + 2}
    v_sub_f32 v{t + 3}, v{PD4}, v{t + 3}
    v_sub_f32 v{t + 4}, v{PD4 + 1}, v{t + 4}
    v_sub_f32 v{t + 5}, v{PD4 + 2}, v{t + 5}
    v_cvt_pk_bf16_f32 v{SN}, 1.0, v{t + 3}
    v_cvt_pk_bf16_f32 v{SN + 1}, v{t + 4}, v{t + 5}
    v_bfe_u32 v{t + 6}, v{REC}, 16, 7
    v_bfe_u32 v{t + 7}, v{REC}, 16, 3
    v_and_b32 v{t + 3}, 0xffff0000, v{SN}
    v_lshlrev_b32 v{t + 4}, 16, v{SN + 1}
    v_and_b32 v{t + 5}, 0xffff0000, v{SN + 1}
    v_mul_f32 v{t + 3}, v{t + 3}, v{t + 3}
    v_mul_f32 v{t + 4}, v{t + 4}, v{t + 4}
    v_mul_f32 v{t + 5}, v{t + 5}, v{t + 5}
    v_mul_u32_u24 v{PD4 + 3}, {RS}, v{t + 6}
    v_lshl_add_u32 v{SAn}, v{t + 7}, 3, v{vSw}
    v_cvt_pk_bf16_f32 v{t + 3}, v{t + 3}, v{t + 4}
    v_cvt_pk_bf16_f32 v{t + 5}, 0, v{t + 5}
    v_lshlrev_b32 v{t + 4}, 16, v{t + 3}
    v_and_b32 v{t + 3}, 0xffff0000, v{t + 3}
    v_add_f32 v{t + 3}, v{t + 4}, v{t + 3}
    v_add_f32 v{t + 3}, v{t + 3}, v{t + 5}
    v_cvt_pk_bf16_f32 v{PRn}, v{t + 3}, v{REC + 1}
    ''')


def stage_w_aoff(a):
    a(f'ds_write_b32 v{vStg}, v{PD4 + 3} offset:256')


def stage_w_pair(a):
    a(f'ds_write_b32 v{vStg}, v{PRn}')


def stage_w_s(a):
    a(f'''
    ds_write_b64 v{SAo}, {vr(ZZ, 2)}
    s_mov_b64 exec, s[{sVal}:{sVal + 1}]
    ds_write_b64 v{SAn}, {vr(SN, 2)}
    s_mov_b64 exec, -1
    ''')


def slot(a, tau):
    cur, nxt = (D0, D1) if tau % 2 == 0 else (D1, D0)
    even = tau % 2 == 0
    exps = [f'v_exp_f32 v{EE + r}, v{cur + r}' for r in range(16)]
    rcps = [f'v_rcp_f32 v{EE + r}, v{EE + r}' for r in range(16)]
    g = GG + 8 * (tau % 4)
    gn = GG + 8 * ((tau + 1) % 4)
    t1 = (tau + 1) % 8
    t2 = (tau + 2) % 8
    for jj in range(4):
        a(f'ds_read_b128 {vr(nxt + 4 * jj, 4)}, v{AD + jj}')
    k = 0
    if even:
        for c in range(4):
            a(mfma(ACC + 16 * c, SF, MM + 4 * c))
            if c == 0:
                a(f's_add_u32 s3, s{sBeta}, 2')
                a(f's_cmp_lt_u32 s3, s{sEnd}')
                a(f's_cselect_b32 s6, {N}, 0')
            for x in range(3):
                a(exps[k]); k += 1
    else:
        for x in range(2):
            a(exps[k]); k += 1
    a(f'''
    ds_read_b128 {vr(AD, 4)}, v{vLaoff} offset:{32 * t2}
    s_mov_b64 exec, s[{sM0}:{sM0 + 1}]
    ds_read2_b32 {vr(PP, 2)}, v{vLpair} offset0:{8 * t1} offset1:{8 * t1}
    s_mov_b64 exec, s[{sM1}:{sM1 + 1}]
    ds_read2_b32 {vr(PP + 2, 2)}, v{vLpair} offset0:{8 * t1} offset1:{8 * t1}
    s_mov_b64 exec, -1
    ''')
    if tau == 6:
        stage_w_pair(a)
    a(exps[k]); k += 1
    if tau == 1:
        a(f'buffer_load_dwordx2 {vr(POSQ, 2)}, v{SAn}, s[8:11], 0 offen')
        a(f'ds_read_b128 {vr(PD4, 4)}, v{PRn}')
    a(f'buffer_load_dwordx4 {vr(g, 4)}, {vr(IDX, 2)}, s[4:7], 0 idxen offen')
    a(exps[k]); k += 1
    a(f'buffer_load_dwordx4 {vr(g + 4, 4)}, {vr(IDX, 2)}, s[4:7], 0 idxen offen offset:128')
    a(f'ds_read_u16 v{IDX}, v{vLidx} offset:{64 * (tau + 5)}')
    if tau == 0:
        a(f'ds_read_b64 {vr(REC, 2)}, v{vLrec} offset:512')
    if not even:
        b = tau // 2
        a(f'ds_read_b64_tr_b16 {vr(SF, 2)}, v{vSr} offset:{1024 * b}')
        a(f'ds_read_b64_tr_b16 {vr(SF + 2, 2)}, v{vSr} offset:{1024 * b + 512}')
        if tau == 7:
            stage_w_s(a)
    while k < 16:
        a(exps[k]); k += 1
    for r in range(0, 16, 2):
        a(f'v_pk_add_f32 {vr(EE + r, 2)}, {vr(EE + r, 2)}, 1.0 op_sel_hi:[1,0]')
    a(f's_waitcnt vmcnt({7 if tau in (1, 2, 3) else 6}) lgkmcnt(0)')
    ms = [mfma(nxt, PP, QQ), mfma(nxt, gn, I0), mfma(nxt, gn + 4, I1)]
    k = 0
    for m in ms:
        a(m)
        for x in range(3):
            a(rcps[k]); k += 1
    while k < 16:
        a(rcps[k]); k += 1
    a(f'''
    v_lshl_add_u64 {vr(AD, 2)}, {vr(AD, 2)}, 0, {vr(AB, 2)}
    v_lshl_add_u64 {vr(AD + 2, 2)}, {vr(AD + 2, 2)}, 0, {vr(AB, 2)}
    ''')
    for r in range(0, 16, 2):
        a(f'v_pk_mul_f32 {vr(EE + r, 2)}, {vr(EE + r, 2)}, {vr(cur + r, 2)}')
    o = 0 if even else 2
    for c in range(4):
        a(f'v_cvt_pk_bf16_f32 v{MM + 4 * c + o}, v{EE + c}, v{EE + 4 + c}')
        a(f'v_cvt_pk_bf16_f32 v{MM + 4 * c + o + 1}, v{EE + 8 + c}, v{EE + 12 + c}')
    if tau == 0:
        a(f'''
        v_mov_b32 v{SAo}, v{SAn}
        v_and_b32 v{SAn}, 0xffff, v{REC}
        v_bfe_u32 v{PRn}, v{REC}, 16, 7
        v_mul_u32_u24 v{SAn}, 6, v{SAn}
        v_lshlrev_b32 v{PRn}, 4, v{PRn}
        v_and_b32 v{SAn}, -4, v{SAn}
        v_add_u32 v{PRn}, {PD}, v{PRn}
        ''')
    if tau == 5:
        stage2(a)
        stage_w_aoff(a)
    if tau == 7:
        a(f'v_add_u32 v{vLidx}, 512, v{vLidx}')
        a(f'v_add_u32 v{vLrec}, 512, v{vLrec}')
    if even:
        a(f'''
        s_cmp_eq_u32 s{sBeta}, s{sGend}
        s_cbranch_scc0 K2_NF{tau}
        s_call_b64 s[{sRet}:{sRet + 1}], K2_FLUSH
        K2_NF{tau}:
        ''')
    else:
        a(f'''
        s_add_u32 s{sBeta}, s{sBeta}, 1
        s_cmp_lt_u32 s{sBeta}, s{sEnd}
        s_cbranch_scc0 K2_DRAIN
        ''')


def flush(a):
    t = EE
    A = lambda c, jj, ii: ACC + 16 * c + 4 * jj + ii
    V1 = lambda jj: t + jj
    V23 = lambda jj: t + 4 + 2 * jj
    a('K2_FLUSH:')
    a(f'''
    s_mul_i32 s3, s{sG}, {8 * RS}
    v_add_u32 v{t + 12}, s3, v{vFl}
    s_lshl_b32 s3, s{sG}, 7
    v_add_u32 v{t + 13}, s3, v{vFp}
    ''')
    for c in range(4):
        a(f'ds_add_f32 v{t + 12}, v{A(c, 0, 0)} offset:{128 * c}')
    a(f'''
    s_cmp_eq_u32 s{sG}, 12
    s_cbranch_scc1 K2_FL1
    ''')
    for jj in range(1, 4):
        for c in range(4):
            a(f'ds_add_f32 v{t + 12}, v{A(c, jj, 0)} offset:{128 * c + 2 * RS * jj}')
    a('K2_FL1:')
    for c in range(4):
        for jj in range(4):
            if c == 0:
                a(f'v_mul_f32 v{V1(jj)}, v{WX}, v{A(c, jj, 1)}')
            else:
                a(f'v_fmac_f32 v{V1(jj)}, v{WX + c}, v{A(c, jj, 1)}')
        wp = vr(WX + (c & ~1), 2)
        s = c & 1
        for jj in range(4):
            if c == 0:
                a(f'v_pk_mul_f32 {vr(V23(jj), 2)}, {vr(A(c, jj, 2), 2)}, {wp} op_sel:[0,{s}] op_sel_hi:[1,{s}]')
            else:
                a(f'v_pk_fma_f32 {vr(V23(jj), 2)}, {vr(A(c, jj, 2), 2)}, {wp}, {vr(V23(jj), 2)} op_sel:[0,{s},0] op_sel_hi:[1,{s},1]')
    V = lambda jj, k: V1(jj) if k == 0 else V23(jj) + k - 1
    a(f'''
    v_cmp_ge_u32 vcc, s{sBeta}, v{vGend}
    ''')
    for p in range(2):
        for k in range(3):
            a(f'v_permlane16_swap_b32 v{V(2 * p, k)}, v{V(2 * p + 1, k)}')
    a(f'''
    s_and_b32 vcc_lo, vcc_lo, 0x1fff
    s_bcnt1_i32_b32 s{sG}, vcc_lo
    ''')
    for p in range(2):
        for k in range(3):
            a(f'v_add_f32 v{V(2 * p, k)}, v{V(2 * p, k)}, v{V(2 * p + 1, k)}')
    a(f'v_readlane_b32 s{sGend}, v{vGend}, s{sG}')
    for k in range(3):
        a(f'v_add_f32_dpp v{V(1, k)}, v{V(0, k)}, v{V(0, k)} row_ror:8 row_mask:0xf bank_mask:0x3')
    for k in range(3):
        a(f'v_add_f32_dpp v{V(1, k)}, v{V(2, k)}, v{V(2, k)} row_ror:8 row_mask:0xf bank_mask:0xc')
    a(f'''
    s_waitcnt lgkmcnt(0)
    v_add_f32_dpp v{V(0, 0)}, v{V(1, 0)}, v{V(1, 0)} row_half_mirror row_mask:0xf bank_mask:0x5
    v_add_f32_dpp v{V(0, 1)}, v{V(1, 2)}, v{V(1, 2)} row_half_mirror row_mask:0xf bank_mask:0xf
    v_mov_b64 {vr(t + 10, 2)}, 0
    v_add_f32_dpp v{V(0, 0)}, v{V(1, 1)}, v{V(1, 1)} row_half_mirror row_mask:0xf bank_mask:0xa
    ds_add_f32 v{t + 13}, v{V(0, 0)}
    ds_add_f32 v{t + 13}, v{V(0, 1)} offset:8
    v_mov_b64 {vr(t + 8, 2)}, 0
    s_nop 1
    ''')
    for c in range(4):
        a(mfma(ACC + 16 * c, t + 8, t + 8, '0'))
    a(f's_setpc_b64 s[{sRet}:{sRet + 1}]')


def kd(name, vgpr, sgpr):
    return f'''.section .rodata,"a"
.p2align 6
.amdhsa_kernel {name}
  .amdhsa_next_free_vgpr {vgpr}
  .amdhsa_next_free_sgpr {sgpr}
  .amdhsa_accum_offset {(vgpr + 3) // 4 * 4}
  .amdhsa_group_segment_fixed_size 0
  .amdhsa_kernarg_size 88
  .amdhsa_user_sgpr_count 2
  .amdhsa_user_sgpr_kernarg_segment_ptr 1
  .amdhsa_system_sgpr_workgroup_id_x 1
  .amdhsa_float_denorm_mode_32 3
.end_amdhsa_kernel
'''


HEADER = f'''; EGNN layer: K1 bins the edges by destination bucket and builds B = h @ W2; K2 does the edge MLP,
; @launch kernel=egnn_k1_kernel grid=({K1_GRID},1,1) block=(512,1,1) lds=65536
; @launch kernel=egnn_k2_kernel grid=(256,1,1) block=(512,1,1) lds={LDS_TOTAL}
.amdgcn_target "amdgcn-amd-amdhsa--gfx950"
.text
'''


def build(**opt):
    OPT.update(opt)
    a = Asm()
    gen_k1(a)
    gen_k2(a)
    return HEADER + a.text() + kd('egnn_k1_kernel', 104, 64) + kd('egnn_k2_kernel', 256, 96)


if __name__ == '__main__':
    out = sys.argv[1] if len(sys.argv) > 1 else 'gather_scatter__cheap_equivariant_egnn__graph.s'
    opt = {}
    for x in sys.argv[2:]:
        k, v = x.split('=', 1)
        opt[k] = {'True': True, 'False': False}.get(v, v)
    open(out, 'w').write(build(**opt))
```

```python
import sys

N = 25000
E = 400000
NB = 98
NCH = 128
CH = 3128
CHB = CH * 8
WS_B = 0
WS_REC = 0x640000
WS_OFF = 0x960000
WS_W = 0x990000
WS_END = WS_W + 3 * 32768 + 4096
NLOG2E = 0xBFB8AA3B
NLN2 = 0xBF317218

OPT = dict(stamps=False, st_k1='sc1', st_out='', )


class Asm:
    def __init__(self):
        self.l = []

    def __call__(self, s):
        for x in s.split('\n'):
            x = x.strip()
            if x:
                self.l.append(x)

    def text(self):
        return '\n'.join((x if x.endswith(':') or x.startswith('.') else '    ' + x) for x in self.l) + '\n'


def vr(a, n):
    return f'v[{a}:{a + n - 1}]' if n > 1 else f'v{a}'


def sr(a, n):
    return f's[{a}:{a + n - 1}]' if n > 1 else f's{a}'


def srd(a, d, base, off, nrec, stride=0):
    if off == 0:
        a(f's_mov_b32 s{d}, s{base}')
        if stride:
            a(f's_or_b32 s{d + 1}, s{base + 1}, {stride << 16:#x}')
        else:
            a(f's_mov_b32 s{d + 1}, s{base + 1}')
    else:
        a(f's_add_u32 s{d}, s{base}, {off}')
        a(f's_addc_u32 s{d + 1}, s{base + 1}, 0')
        assert not stride
    a(f's_mov_b32 s{d + 2}, {nrec}')
    a(f's_mov_b32 s{d + 3}, 0x20000')


def mfma(d, A, B, C=None):
    c = vr(d, 16) if C is None else C
    return f'v_mfma_f32_32x32x16_bf16 {vr(d, 16)}, {vr(A, 4)}, {vr(B, 4)}, {c}'


K1_BIN, K1_GEMM, K1_PREP = NCH, 196, 13
K1_GRID = K1_BIN + K1_GEMM + K1_PREP


def gen_k1(a):
    st = OPT['st_k1']
    a('.p2align 8')
    a('.globl egnn_k1_kernel')
    a('.type egnn_k1_kernel,@function')
    a('egnn_k1_kernel:')
    a(f'''
    s_load_dwordx16 s[36:51], s[0:1], 0
    s_load_dwordx2 s[52:53], s[0:1], 80
    s_cmp_lt_u32 s2, {K1_BIN}
    s_cbranch_scc1 K1_BIN
    s_cmp_lt_u32 s2, {K1_BIN + K1_GEMM}
    s_cbranch_scc1 K1_GEMM
    s_cmp_lt_u32 s2, {K1_GRID - 1}
    s_cbranch_scc1 K1_PREP
    s_cmp_lt_u32 s2, {K1_GRID}
    s_cbranch_scc1 K1_CONST
    s_endpgm
    ''')
    HIST, BASE, SORTED = 0, 1024, 2048
    a('K1_BIN:')
    a(f'''
    v_lshlrev_b32 v1, 2, v0
    v_mov_b32 v2, 0
    s_mul_i32 s3, s2, {CH}
    v_add_u32 v3, s3, v1
    v_add_u32 v4, {391 * 4}, v3
    v_cmp_gt_u32 vcc, 256, v0
    s_and_saveexec_b64 s[20:21], vcc
    ds_write_b32 v1, v2 offset:{HIST}
    s_mov_b64 exec, s[20:21]
    s_mov_b32 s22, {E}
    v_cmp_gt_u32 s[24:25], s22, v3
    v_cmp_gt_u32 s[26:27], s22, v4
    v_cmp_gt_u32 vcc, 391, v0
    v_mov_b32 v5, 0x7fffff00
    s_and_b64 s[24:25], s[24:25], vcc
    s_and_b64 s[26:27], s[26:27], vcc
    v_lshlrev_b32 v6, 2, v3
    v_lshlrev_b32 v7, 2, v4
    v_lshlrev_b32 v8, 1, v3
    v_lshlrev_b32 v9, 1, v4
    v_cndmask_b32_e64 v6, v5, v6, s[24:25]
    v_cndmask_b32_e64 v7, v5, v7, s[26:27]
    v_cndmask_b32_e64 v8, v5, v8, s[24:25]
    v_cndmask_b32_e64 v9, v5, v9, s[26:27]
    s_waitcnt lgkmcnt(0)
    ''')
    srd(a, 4, 44, 0, E * 4)
    srd(a, 8, 42, 0, E * 4)
    srd(a, 12, 40, 0, E * 2)
    DST, SRC, EA, BK, RK, RC = 12, 20, 28, 32, 40, 48
    a(f'''
    buffer_load_dwordx4 {vr(DST, 4)}, v6, s[4:7], 0 offen
    buffer_load_dwordx4 {vr(DST + 4, 4)}, v7, s[4:7], 0 offen
    buffer_load_dwordx4 {vr(SRC, 4)}, v6, s[8:11], 0 offen
    buffer_load_dwordx4 {vr(SRC + 4, 4)}, v7, s[8:11], 0 offen
    buffer_load_dwordx2 {vr(EA, 2)}, v8, s[12:15], 0 offen
    buffer_load_dwordx2 {vr(EA + 2, 2)}, v9, s[12:15], 0 offen
    s_mul_i32 s3, s2, {CHB}
    s_add_u32 s3, s3, {WS_REC}
    ''')
    srd(a, 16, 52, 's3', CHB)
    a(f'''
    s_lshl_b32 s3, s2, 10
    s_add_u32 s3, s3, {WS_OFF}
    ''')
    srd(a, 28, 52, 's3', 1024)
    a(f'''
    s_movk_i32 s22, 21400
    s_movk_i32 s23, -98
    v_mov_b32 v10, 1
    s_barrier
    s_waitcnt vmcnt(4)
    ''')
    for i in range(8):
        a(f'v_mul_u32_u24 v{BK + i}, s22, v{DST + i}')
    for i in range(8):
        a(f'v_lshrrev_b32 v{BK + i}, 21, v{BK + i}')
    for i in range(8):
        a(f'v_mad_i32_i24 v{DST + i}, v{BK + i}, s23, v{DST + i}')
    for i in range(8):
        a(f'v_lshlrev_b32 v{BK + i}, 2, v{BK + i}')
    for g in range(2):
        a(f's_mov_b64 exec, s[{24 + 2 * g}:{25 + 2 * g}]')
        for i in range(4 * g, 4 * g + 4):
            a(f'ds_add_rtn_u32 v{RK + i}, v{BK + i}, v10 offset:{HIST}')
    a('s_mov_b64 exec, -1')
    a('s_waitcnt vmcnt(0)')
    for i in range(8):
        a(f'v_lshl_or_b32 v{RC + 2 * i}, v{DST + i}, 16, v{SRC + i}')
        if i & 1:
            a(f'v_and_b32 v{RC + 2 * i + 1}, 0xffff0000, v{EA + i // 2}')
        else:
            a(f'v_lshlrev_b32 v{RC + 2 * i + 1}, 16, v{EA + i // 2}')
    a(f'''
    v_and_b32 v1, 63, v0
    v_lshlrev_b32 v1, 4, v1
    s_waitcnt lgkmcnt(0)
    s_barrier
    ds_read_b128 v[4:7], v1 offset:{HIST}
    s_waitcnt lgkmcnt(0)
    v_add_u32 v12, v4, v5
    v_add3_u32 v14, v12, v6, v7
    v_add_u32 v13, v12, v6
    v_mov_b32 v15, v14
    s_nop 1
    v_add_u32_dpp v15, v15, v15 row_shr:1 row_mask:0xf bank_mask:0xf
    s_nop 1
    v_add_u32_dpp v15, v15, v15 row_shr:2 row_mask:0xf bank_mask:0xf
    s_nop 1
    v_add_u32_dpp v15, v15, v15 row_shr:4 row_mask:0xf bank_mask:0xf
    s_nop 1
    v_add_u32_dpp v15, v15, v15 row_shr:8 row_mask:0xf bank_mask:0xf
    s_nop 1
    v_add_u32_dpp v15, v15, v15 row_bcast:15 row_mask:0xa bank_mask:0xf
    s_nop 1
    v_add_u32_dpp v15, v15, v15 row_bcast:31 row_mask:0xc bank_mask:0xf
    v_sub_u32 v16, v15, v14
    v_add_u32 v17, v16, v4
    v_add_u32 v18, v16, v12
    v_add_u32 v19, v16, v13
    ds_write_b128 v1, v[16:19] offset:{BASE}
    ''')
    for i in range(8):
        a(f'ds_read_b32 v{20 + i}, v{BK + i} offset:{BASE}')
    a(f'''
    v_lshl_or_b32 v16, v4, 16, v16
    v_lshl_or_b32 v17, v5, 16, v17
    v_lshl_or_b32 v18, v6, 16, v18
    v_lshl_or_b32 v19, v7, 16, v19
    v_lshlrev_b32 v1, 4, v0
    buffer_store_dwordx4 v[16:19], v1, s[28:31], 0 offen {st}
    s_waitcnt lgkmcnt(0)
    ''')
    for i in range(8):
        a(f'v_add_lshl_u32 v{20 + i}, v{20 + i}, v{RK + i}, 3')
    for g in range(2):
        a(f's_mov_b64 exec, s[{24 + 2 * g}:{25 + 2 * g}]')
        for i in range(4 * g, 4 * g + 4):
            a(f'ds_write_b64 v{20 + i}, {vr(RC + 2 * i, 2)} offset:{SORTED}')
    a(f'''
    s_mov_b64 exec, -1
    s_movk_i32 s20, 8192
    s_movk_i32 s21, 16384
    s_movk_i32 s22, 24576
    s_waitcnt lgkmcnt(0)
    s_barrier
    ''')
    for i in range(4):
        a(f'ds_read_b128 {vr(4 + 4 * i, 4)}, v1 offset:{SORTED + 8192 * i}')
    for i in range(4):
        a(f's_waitcnt lgkmcnt({3 - i})')
        a(f'buffer_store_dwordx4 {vr(4 + 4 * i, 4)}, v1, s[16:19], {["0", "s20", "s21", "s22"][i]} offen {st}')
    a('s_endpgm')

    HT, WT = 0, 32768
    a('K1_GEMM:')
    a(f'''
    v_lshrrev_b32 v1, 6, v0
    v_and_b32 v0, 63, v0
    v_readfirstlane_b32 s24, v1                 ; wave
    s_sub_u32 s3, s2, {K1_BIN}
    s_lshl_b32 s20, s3, 15
    s_sub_u32 s21, {N * 256}, s20
    s_min_u32 s21, s21, 32768
    v_lshrrev_b32 v2, 4, v0
    v_and_b32 v3, 15, v0                        ; slot
    s_and_b32 s25, s24, 3
    s_lshl_b32 s25, s25, 2
    v_add_u32 v4, s25, v2                       ; row & 15
    v_xor_b32 v4, v4, v3
    v_lshlrev_b32 v4, 4, v4
    v_lshl_add_u32 v4, v2, 8, v4
    v_lshlrev_b32 v5, 2, v2
    v_xor_b32 v5, v5, v3
    v_lshlrev_b32 v5, 4, v5
    v_lshl_add_u32 v5, v2, 8, v5
    s_lshl_b32 s26, s24, 10
    s_waitcnt lgkmcnt(0)
    ''')
    srd(a, 4, 36, 's20', 's21')
    srd(a, 8, 46, 128 * 256, 32768)
    srd(a, 12, 52, 's20', 's21')
    for i in range(4):
        a(f'''
        s_add_u32 s27, s26, {8192 * i}
        s_add_u32 m0, s26, {HT + 8192 * i}
        s_add_u32 s28, s26, {WT + 8192 * i}
        buffer_load_dwordx4 v4, s[4:7], s27 offen lds
        s_mov_b32 m0, s28
        s_nop 0
        buffer_load_dwordx4 v5, s[8:11], s27 offen lds
        ''')
    a(f'''
    s_lshr_b32 s29, s24, 1                      ; nt
    s_and_b32 s30, s24, 1                       ; ch
    v_and_b32 v6, 31, v0                        ; i
    v_lshrrev_b32 v7, 5, v0                     ; h
    v_xor_b32 v8, v7, v3                        ; h ^ (i&15)
    v_lshlrev_b32 v8, 4, v8
    v_lshl_add_u32 v8, v6, 8, v8
    s_lshl_b32 s31, s29, 13
    v_add_u32 v8, s31, v8
    v_lshrrev_b32 v9, 2, v3                     ; r
    v_lshl_add_u32 v10, v7, 3, v9               ; 8h + r
    v_lshlrev_b32 v10, 8, v10
    v_and_b32 v11, 1, v2                        ; gq&1
    v_lshl_add_u32 v10, v11, 5, v10
    v_and_b32 v11, 3, v0                        ; cc
    v_lshl_add_u32 v10, v11, 3, v10
    s_lshl_b32 s31, s30, 1
    v_xor_b32 v11, s31, v9                      ; ct0 ^ r
    v_lshl_add_u32 v12, v11, 6, v10
    v_xor_b32 v13, 64, v12
    ''')
    for s in range(1, 8):
        a(f'v_xor_b32 v{16 + s}, {32 * s}, v8')
    a(f'''
    v_lshlrev_b32 v14, 10, v7
    v_lshl_add_u32 v14, v6, 2, v14
    s_lshl_b32 s31, s29, 13
    s_lshl_b32 s33, s30, 7
    s_add_u32 s31, s31, s33
    s_add_u32 s32, s31, 4096
    s_mov_b32 s34, {NLOG2E:#x}
    s_mov_b32 s35, {NLOG2E:#x}
    s_waitcnt vmcnt(0)
    s_barrier
    ''')
    H, W0, W1, D0, D1 = 24, 40, 56, 72, 88
    for s in range(8):
        q = 4 * (s & 3)
        a(f'ds_read_b128 {vr(H + q, 4)}, v{8 if s == 0 else 16 + s} offset:{HT}')
        for rr in range(2):
            a(f'ds_read_b64_tr_b16 {vr(W0 + q + 2 * rr, 2)}, v12 offset:{WT + 4096 * s + 1024 * rr}')
        for rr in range(2):
            a(f'ds_read_b64_tr_b16 {vr(W1 + q + 2 * rr, 2)}, v13 offset:{WT + 4096 * s + 1024 * rr}')
        if s >= 2:
            k = s - 2
            q = 4 * (k & 3)
            a('s_waitcnt lgkmcnt(10)')
            a(mfma(D0, H + q, W0 + q, '0' if k == 0 else None))
            a(mfma(D1, H + q, W1 + q, '0' if k == 0 else None))
    for k in (6, 7):
        q = 4 * (k & 3)
        a(f's_waitcnt lgkmcnt({5 * (7 - k)})')
        a(mfma(D0, H + q, W0 + q))
        a(mfma(D1, H + q, W1 + q))
    a('s_nop 10')
    for r in range(0, 16, 2):
        a(f'v_pk_mul_f32 {vr(D0 + r, 2)}, {vr(D0 + r, 2)}, s[34:35]')
    for r in range(0, 16, 2):
        a(f'v_pk_mul_f32 {vr(D1 + r, 2)}, {vr(D1 + r, 2)}, s[34:35]')
    for r in range(16):
        a(f'v_cvt_pk_bf16_f32 v{24 + r}, v{D0 + r}, v{D1 + r}')
        jj, ii = r >> 2, r & 3
        a(f'buffer_store_dword v{24 + r}, v14, s[12:15], {"s31" if jj < 2 else "s32"} offen offset:{(jj & 1) * 2048 + ii * 256} {st}')
    a('s_endpgm')

    a('K1_PREP:')
    a(f'''
    s_sub_u32 s3, s2, {K1_BIN + K1_GEMM}
    s_lshr_b32 s20, s3, 2                       ; matrix
    s_and_b32 s21, s3, 3                        ; tile
    v_lshrrev_b32 v1, 6, v0                     ; s
    v_and_b32 v2, 31, v0                        ; i
    v_bfe_u32 v3, v0, 5, 1                      ; h
    ; column
    s_lshr_b32 s22, s21, 1
    s_lshl_b32 s22, s22, 6
    s_and_b32 s23, s21, 1
    s_cmp_eq_u32 s20, 0
    s_cbranch_scc0 K1_PREP_C1
    s_lshl_b32 s23, s23, 4
    v_bfe_u32 v4, v2, 2, 1
    v_lshlrev_b32 v4, 5, v4
    v_and_b32 v5, 3, v2
    v_lshl_add_u32 v4, v5, 2, v4
    v_lshrrev_b32 v5, 3, v2
    v_add_u32 v4, v4, v5
    s_branch K1_PREP_C2
    K1_PREP_C1:
    v_lshlrev_b32 v4, 1, v2
    K1_PREP_C2:
    s_add_u32 s22, s22, s23
    v_add_u32 v4, s22, v4                       ; column
    v_lshlrev_b32 v5, 4, v1
    v_lshl_add_u32 v5, v3, 3, v5                ; 16s+8h
    s_movk_i32 s24, 256
    s_movk_i32 s25, 512
    s_cmp_eq_u32 s20, 2
    s_cbranch_scc0 K1_PREP_R
    v_and_b32 v5, 1, v1
    v_lshlrev_b32 v5, 6, v5
    v_lshl_add_u32 v5, v3, 4, v5
    v_lshrrev_b32 v6, 1, v1
    v_lshl_add_u32 v5, v6, 2, v5
    v_add_u32 v5, 128, v5
    s_movk_i32 s24, 8192
    s_movk_i32 s25, 256
    K1_PREP_R:
    v_lshlrev_b32 v5, 8, v5
    v_lshl_add_u32 v5, v4, 1, v5
    s_waitcnt lgkmcnt(0)
    s_cmp_eq_u32 s20, 0
    s_cselect_b32 s4, s46, s50
    s_cselect_b32 s5, s47, s51
    s_mov_b32 s6, 65540
    s_mov_b32 s7, 0x20000
    s_lshl_b32 s3, s3, 13
    s_add_u32 s3, s3, {WS_W}
    ''')
    srd(a, 8, 52, 's3', 8192)
    a('s_mov_b32 s26, 0')
    for x in range(4):
        a(f'''
        s_add_u32 s27, s26, s24
        buffer_load_ushort v{8 + x}, v5, s[4:7], s26 offen
        buffer_load_ushort v{12 + x}, v5, s[4:7], s27 offen
        s_add_u32 s26, s26, s25
        ''')
    a(f'''
    v_lshlrev_b32 v1, 4, v0
    s_waitcnt vmcnt(0)
    v_lshl_or_b32 v8, v12, 16, v8
    v_lshl_or_b32 v9, v13, 16, v9
    v_lshl_or_b32 v10, v14, 16, v10
    v_lshl_or_b32 v11, v15, 16, v11
    buffer_store_dwordx4 v[8:11], v1, s[8:11], 0 offen {st}
    s_endpgm
    ''')
    a('K1_CONST:')
    a(f'''
    v_readfirstlane_b32 s3, v0
    s_nop 3
    s_cmp_lt_u32 s3, 64
    s_cbranch_scc0 K1_END
    v_and_b32 v2, 31, v0                        ; j
    v_lshrrev_b32 v3, 5, v0                     ; h
    v_lshrrev_b32 v4, 4, v2
    v_lshlrev_b32 v4, 6, v4
    v_and_b32 v5, 1, v2
    v_lshl_add_u32 v4, v5, 5, v4
    v_bfe_u32 v5, v2, 3, 1
    v_lshl_add_u32 v4, v5, 4, v4
    v_bfe_u32 v5, v2, 1, 2
    v_add_u32 v4, v4, v5                        ; feature(0,j)
    v_lshlrev_b32 v4, 1, v4
    v_lshl_add_u32 v5, v3, 4, v4
    s_waitcnt lgkmcnt(0)
    ''')
    srd(a, 4, 46, 65536, 516)
    srd(a, 8, 48, 0, 260)
    srd(a, 12, 52, WS_W + 3 * 32768, 4096)
    a(f'''
    buffer_load_ushort v8, v5, s[4:7], 0 offen
    buffer_load_ushort v9, v5, s[4:7], 0 offen offset:256
    buffer_load_ushort v10, v5, s[4:7], 0 offen offset:8
    buffer_load_ushort v11, v5, s[4:7], 0 offen offset:264
    buffer_load_ushort v12, v4, s[8:11], 0 offen
    buffer_load_ushort v13, v4, s[8:11], 0 offen offset:8
    buffer_load_ushort v14, v4, s[8:11], 0 offen offset:16
    buffer_load_ushort v15, v4, s[8:11], 0 offen offset:24
    v_lshlrev_b32 v1, 4, v0
    v_lshlrev_b32 v6, 3, v3
    v_sub_u32 v6, v2, v6                        ; d = j - 8h
    v_and_b32 v7, 1, v2
    v_lshlrev_b32 v7, 4, v7
    v_mov_b32 v16, 0x3f80
    v_lshlrev_b32 v7, v7, v16
    v_ashrrev_i32 v6, 1, v6
    ''')
    for x in range(8):
        sel = x if x < 4 else x + 4
        a(f'''
        v_cmp_eq_u32 vcc, {sel}, v6
        s_nop 1
        v_cndmask_b32_e64 v{20 + x}, 0, v7, vcc
        ''')
    a(f'''
    buffer_store_dwordx4 v[20:23], v1, s[12:15], 0 offen {st}
    buffer_store_dwordx4 v[24:27], v1, s[12:15], 0 offen offset:1024 {st}
    s_mov_b32 s20, {NLOG2E:#x}
    s_mov_b32 s21, {NLN2:#x}
    s_waitcnt vmcnt(2)
    ''')
    for x in range(8):
        a(f'v_lshlrev_b32 v{8 + x}, 16, v{8 + x}')
    for x in range(4):
        a(f'v_mul_f32 v{8 + x}, s20, v{8 + x}')
        a(f'v_mul_f32 v{12 + x}, s21, v{12 + x}')
    a(f'''
    v_cvt_pk_bf16_f32 v28, v8, v9
    v_cvt_pk_bf16_f32 v30, v10, v11
    v_lshlrev_b32 v16, 16, v28
    v_and_b32 v17, 0xffff0000, v28
    v_lshlrev_b32 v18, 16, v30
    v_and_b32 v19, 0xffff0000, v30
    v_sub_f32 v8, v8, v16
    v_sub_f32 v9, v9, v17
    v_sub_f32 v10, v10, v18
    v_sub_f32 v11, v11, v19
    v_cvt_pk_bf16_f32 v29, v8, v9
    v_cvt_pk_bf16_f32 v31, v10, v11
    buffer_store_dwordx4 v[28:31], v1, s[12:15], 0 offen offset:2048 {st}
    buffer_store_dwordx4 v[12:15], v1, s[12:15], 0 offen offset:3072 {st}
    K1_END:
    s_endpgm
    ''')


RS = 528
ATAB = 0
MACC = NB * RS
STG = 2 * NB * RS
PACC = STG + 4096
SPARE = PACC + 1664
PD = 110112
CNT = PD + 1568
LIST = CNT + 128
CAP = 2048
SBUF = LIST + (CAP + 128) * 8
LDS_TOTAL = SBUF + 32768
HT2 = MACC
WH1L = HT2 + 25600
assert WH1L + 32768 <= PD and SPARE <= PD and LDS_TOTAL <= 163840

ACC, CC, D0, D1, EE, MM, GG = 0, 64, 96, 112, 128, 144, 160
SF, PP, I0, I1, QQ, WX = 192, 196, 200, 204, 208, 212
IDX, AD, AB = 216, 218, 222
vLidx, vLpair, vLaoff, vSr, vSw, vLrec, vStg, vFl, vFp, vGend = range(224, 234)
REC, POSQ, PD4, SN, SAn, SAo, PRn, ZZ = 234, 236, 238, 242, 244, 245, 246, 248
vLane, vX0, vX1, vX2, vT, vX4 = 250, 251, 252, 253, 254, 255
vX3 = AD
RCD = 234

sB, sW, sRound, sMode, sQ, sO, sMore = 24, 25, 26, 27, 28, 29, 30
sBeta, sEnd, sG, sGend, sT = 31, 32, 33, 34, 35
sRet = 54
sM0, sM1, sVal = 56, 58, 60
sMask = 64
sC0 = 80
sT0, sT1, sT2, sT3 = 82, 83, 84, 85
sN0 = 86
sGp, sFm, sTail, sSer = 48, 49, 50, 51
sNv = 87
sStamp = 88


def stamp(a, k):
    if OPT['stamps']:
        a(f's_memtime s[{sStamp}:{sStamp + 1}]')
        a('s_waitcnt lgkmcnt(0)')
        a(f'v_writelane_b32 v{vX4}, s{sStamp}, {k}')


def gen_k2(a):
    so = OPT['st_out']
    a('.p2align 8')
    a('.globl egnn_k2_kernel')
    a('.type egnn_k2_kernel,@function')
    a('egnn_k2_kernel:')
    a(f'''
    s_cmp_lt_u32 s2, 256
    s_cbranch_scc1 K2_GO
    s_endpgm
    K2_GO:
    s_load_dwordx4 s[36:39], s[0:1], 0
    s_load_dwordx2 s[40:41], s[0:1], 64
    s_load_dwordx2 s[42:43], s[0:1], 80
    ''')
    if OPT['stamps']:
        a(f'v_mov_b32 v{vX4}, 0')
        a(f's_memtime s[{sStamp + 2}:{sStamp + 3}]')
    a(f'''
    v_mov_b32 v{vT}, v0
    v_lshrrev_b32 v1, 6, v0
    v_and_b32 v{vLane}, 63, v0
    v_readfirstlane_b32 s{sW}, v1
    s_and_b32 s3, s2, 7
    s_lshl_b32 s3, s3, 5
    s_lshr_b32 s{sB}, s2, 3
    s_add_u32 s{sB}, s{sB}, s3
    s_mul_i32 s{sN0}, s{sB}, {NB}
    s_mov_b32 s{sRound}, 0
    s_mov_b32 s{sMode}, 0
    s_mov_b32 s{sQ}, 0
    s_mov_b32 s{sO}, 0
    s_sub_u32 s3, {N}, s{sN0}
    s_min_u32 s3, s3, {NB}
    s_lshl_b32 s{sT0}, s{sN0}, 8
    s_lshl_b32 s{sT1}, s3, 8
    s_mul_i32 s{sT2}, s{sN0}, 6
    s_add_u32 s{sT2}, s{sT2}, {N * 256}
    s_mul_i32 s{sT3}, s3, 6
    s_add_u32 s{sT3}, s{sT3}, 2
    s_mov_b32 s{sNv}, s3
    s_waitcnt lgkmcnt(0)
    ''')
    if OPT['stamps']:
        a(f'v_writelane_b32 v{vX4}, s{sStamp + 2}, 0')
    srd(a, 12, 42, WS_REC, WS_END - WS_REC)
    srd(a, 4, 42, 0, N, stride=256)
    srd(a, 8, 38, 0, N * 6)
    srd(a, 16, 36, f's{sT0}', f's{sT1}')
    srd(a, 20, 40, f's{sT0}', f's{sT1}')
    srd(a, 44, 40, f's{sT2}', f's{sT3}')
    a('K2_ROUND:')
    EN = SF
    a(f'''
    v_lshrrev_b32 v1, 4, v{vT}
    v_lshlrev_b32 v2, 10, v1
    s_lshl_b32 s3, s{sB}, 2
    s_add_u32 s3, s3, {WS_OFF - WS_REC}
    ''')
    for i in range(4):
        a(f'buffer_load_dword v{EN + i}, v2, s[12:15], s3 offen')
        if i < 3:
            a(f's_add_u32 s3, s3, 32768')
    a(f'''
    s_cmp_eq_u32 s{sRound}, 0
    s_cbranch_scc0 K2_NOBULK
    ''')
    W1F = 128
    a(f'''
    v_lshrrev_b32 v3, 4, v{vLane}
    v_and_b32 v4, 15, v{vLane}
    s_and_b32 s3, s{sW}, 3
    s_lshl_b32 s{sT1}, s3, 2
    v_add_u32 v5, s{sT1}, v3
    v_xor_b32 v5, v5, v4
    v_lshlrev_b32 v5, 4, v5
    v_lshl_add_u32 v5, v3, 8, v5
    v_lshlrev_b32 v6, 4, v{vLane}
    s_lshl_b32 s{sT0}, s{sW}, 10
    s_add_u32 m0, s{sT0}, {HT2}
    s_lshl_b32 s3, s3, 13
    s_add_u32 s3, s3, {WS_W - WS_REC}
    buffer_load_dwordx4 v5, s[16:19], s{sT0} offen lds
    ''')
    for i in (1, 2):
        a(f'''
        s_add_u32 m0, s{sT0}, {HT2 + 8192 * i}
        s_add_u32 s{sT1}, s{sT0}, {8192 * i}
        buffer_load_dwordx4 v5, s[16:19], s{sT1} offen lds
        ''')
    a(f'''
    v_xor_b32 v7, v3, v4
    v_lshlrev_b32 v7, 4, v7
    v_lshl_add_u32 v7, v3, 8, v7
    s_mov_b32 m0, {HT2 + 24576}
    s_movk_i32 s{sT1}, 24576
    buffer_load_dwordx4 v7, s[16:19], s{sT1} offen lds
    ''')
    for s in range(8):
        if s == 4:
            a('s_add_u32 s3, s3, 4096')
        a(f'buffer_load_dwordx4 {vr(W1F + 4 * s, 4)}, v6, s[12:15], s3 offen offset:{1024 * (s & 3)}')
    a(f'''
    s_lshl_b32 s{sT0}, s{sW}, 12
    s_add_u32 m0, s{sT0}, {WH1L}
    s_add_u32 s{sT0}, s{sT0}, {WS_W - WS_REC + 32768}
    ''')
    for i in range(4):
        a(f'buffer_load_dwordx4 v6, s[12:15], s{sT0} offen offset:{1024 * i} lds')
    a(f's_mov_b32 s3, {WS_W - WS_REC + 3 * 32768}')
    for i in range(4):
        a(f'buffer_load_dwordx4 {vr(I0 + 4 * i, 4)}, v6, s[12:15], s3 offen offset:{1024 * i}')
    a(f'''
    v_add_u32 v7, s{sN0}, v{vT}
    v_mul_u32_u24 v7, 6, v7
    v_and_b32 v7, -4, v7
    buffer_load_dwordx2 v[{vX1}:{vX2}], v7, s[8:11], 0 offen
    ''')
    NBULK = 4 + 8 + 4 + 4 + 1
    a(f'''
    K2_NOBULK:
    v_and_b32 v8, 31, v{vLane}                  ; j
    v_lshrrev_b32 v9, 5, v{vLane}               ; h
    v_and_b32 v10, 3, v{vLane}                  ; c
    v_lshlrev_b32 v{IDX + 1}, 4, v10
    v_lshl_add_u32 v{IDX + 1}, v9, 6, v{IDX + 1}
    v_lshlrev_b32 v{AB}, 4, v8
    v_mov_b32 v{AB + 1}, v{AB}
    v_bfe_u32 v11, v{vLane}, 2, 1
    v_bfe_u32 v12, v{vLane}, 3, 2
    v_lshl_add_u32 v{vX0}, v11, 2, v12          ; lambda(e)
    s_lshl_b32 s3, s{sW}, 9
    s_add_u32 s3, s3, {STG}
    v_lshl_add_u32 v{vLpair}, v{vX0}, 2, s3
    v_lshl_add_u32 v{vStg}, v{vLane}, 2, s3
    s_add_u32 s3, s3, 256
    v_lshl_add_u32 v{vLaoff}, v9, 4, s3
    s_lshl_b32 s3, s{sW}, 12
    s_add_u32 s3, s3, {SBUF}
    v_lshl_add_u32 v{vSw}, v{vLane}, 6, s3
    v_bfe_u32 v11, v{vLane}, 2, 2               ; r
    v_lshl_add_u32 v11, v9, 2, v11
    v_lshl_add_u32 v{vSr}, v11, 6, s3
    v_bfe_u32 v11, v{vLane}, 4, 1
    v_lshl_add_u32 v{vSr}, v11, 5, v{vSr}
    v_lshl_add_u32 v{vSr}, v10, 3, v{vSr}
    v_mul_u32_u24 v{vFl}, {RS}, v9
    v_lshl_add_u32 v{vFl}, v8, 2, v{vFl}
    v_add_u32 v{vFl}, {MACC}, v{vFl}
    v_bfe_u32 v12, v{vLane}, 3, 1               ; p
    v_lshl_add_u32 v12, v12, 1, v11
    v_lshl_add_u32 v12, v12, 1, v9
    v_bfe_u32 v11, v{vLane}, 2, 1
    v_lshlrev_b32 v11, 2, v11
    v_lshl_add_u32 v{vFp}, v12, 4, v11
    v_add_u32 v{vFp}, {PACC}, v{vFp}
    v_lshlrev_b32 v11, 1, v9
    v_cmp_eq_u32 s[{sM0}:{sM0 + 1}], v10, v11
    v_add_u32 v11, 1, v11
    v_cmp_eq_u32 s[{sM1}:{sM1 + 1}], v10, v11
    ''')
    a(f'''
    v_mov_b32 v12, 0
    v_mov_b32 v13, 0
    v_mov_b32 v14, 0
    v_mov_b32 v15, 0
    v_bfrev_b32 v16, 1
    v_mov_b32 v17, 0
    v_bfrev_b32 v18, 1
    v_mov_b32 v19, 0
    v_lshlrev_b32 v3, 4, v{vT}
    v_add_u32 v4, {LIST}, v3
    v_add_u32 v3, {SBUF}, v3
    ds_write_b128 v4, v[16:19]
    ds_write_b128 v4, v[16:19] offset:8192
    ds_write_b128 v3, v[12:15]
    ds_write_b128 v3, v[12:15] offset:8192
    ds_write_b128 v3, v[12:15] offset:16384
    ds_write_b128 v3, v[12:15] offset:24576
    v_lshlrev_b32 v3, 4, v{vLane}
    v_add_u32 v3, {LIST + 16384}, v3
    ds_write_b128 v3, v[16:19]
    v_and_b32 v3, 31, v{vLane}
    v_lshlrev_b32 v3, 2, v3
    v_add_u32 v3, {CNT}, v3
    ds_write_b32 v3, v12
    v_and_b32 v3, 15, v{vT}
    v_lshl_add_u32 v3, v3, 1, s{sO}             ; o + 2*(t&15)
    v_mul_u32_u24 v4, {CHB}, v1
    v_lshl_add_u32 v4, v3, 3, v4
    v_bfrev_b32 v5, 1
    s_cmp_eq_u32 s{sRound}, 0
    s_cbranch_scc1 K2_W0
    s_waitcnt vmcnt(0)
    K2_W0:
    s_waitcnt vmcnt({NBULK})
    ''')
    stamp(a, 1)
    for i in range(4):
        a(f'''
        v_lshrrev_b32 v{8 + i}, 16, v{EN + i}
        v_and_b32 v{EN + i}, 0xffff, v{EN + i}
        v_sub_u32 v{12 + i}, v{8 + i}, v3
        v_lshl_add_u32 v{EN + i}, v{EN + i}, 3, v4
        v_cmp_lt_i32 s[{sMask + 4 * i}:{sMask + 4 * i + 1}], 0, v{12 + i}
        v_cmp_lt_i32 s[{sMask + 4 * i + 2}:{sMask + 4 * i + 3}], 1, v{12 + i}
        ''')
    a(f'''
    s_cmp_eq_u32 s{sMode}, 0
    s_cbranch_scc1 K2_ALLQ
    ''')
    for i in range(4):
        a(f'''
        s_cmp_eq_u32 s{sQ}, {i}
        s_cselect_b64 s[{sMask + 4 * i}:{sMask + 4 * i + 1}], s[{sMask + 4 * i}:{sMask + 4 * i + 1}], 0
        s_cselect_b64 s[{sMask + 4 * i + 2}:{sMask + 4 * i + 3}], s[{sMask + 4 * i + 2}:{sMask + 4 * i + 3}], 0
        ''')
    a('K2_ALLQ:')
    a('s_mov_b32 s3, 0')
    for i in range(4):
        a(f'''
        v_cndmask_b32_e64 v{EN + i}, v5, v{EN + i}, s[{sMask + 4 * i}:{sMask + 4 * i + 1}]
        buffer_load_dwordx4 {vr(RCD + 4 * i, 4)}, v{EN + i}, s[12:15], s3 offen
        ''')
        if i < 3:
            a(f's_add_u32 s3, s3, {32 * CHB}')
    a(f'''
    v_max3_u32 v8, v8, v9, v10
    v_max_u32 v{vX3}, v8, v11
    s_waitcnt vmcnt(4) lgkmcnt(0)
    s_barrier
    ''')
    stamp(a, 2)
    a(f'''
    s_cmp_eq_u32 s{sRound}, 0
    s_cbranch_scc0 K2_NOGEMM
    ''')
    H0, H1, AO, WB = 0, 32, 96, 160
    T = SF
    a(f'''
    v_add_u32 v{T}, s{sN0}, v{vT}
    v_lshlrev_b32 v{T}, 4, v{T}
    v_alignbit_b32 v{T + 1}, v{vX2}, v{vX1}, v{T}
    v_lshrrev_b32 v{T + 6}, v{T}, v{vX2}
    v_lshlrev_b32 v{T + 4}, 16, v{T + 1}
    v_and_b32 v{T + 5}, 0xffff0000, v{T + 1}
    v_lshlrev_b32 v{T + 6}, 16, v{T + 6}
    v_mov_b32 v{T + 7}, 0
    v_lshlrev_b32 v{T}, 4, v{vT}
    v_add_u32 v{T}, {PD}, v{T}
    v_cmp_gt_u32 vcc, {NB}, v{vT}
    s_and_saveexec_b64 s[{sT0}:{sT0 + 1}], vcc
    ds_write_b128 v{T}, {vr(T + 4, 4)}
    s_mov_b64 exec, s[{sT0}:{sT0 + 1}]
    v_and_b32 v{T}, 31, v{vLane}                ; i
    v_lshrrev_b32 v{T + 1}, 5, v{vLane}         ; h
    v_and_b32 v{T + 2}, 15, v{vLane}
    v_xor_b32 v{T + 2}, v{T + 2}, v{T + 1}
    v_lshlrev_b32 v{T + 2}, 4, v{T + 2}
    v_lshl_add_u32 v{T + 2}, v{T}, 8, v{T + 2}
    s_lshr_b32 s3, s{sW}, 1                     ; nt
    s_lshl_b32 s{sT0}, s3, 13
    v_add_u32 v{T + 2}, s{sT0}, v{T + 2}
    s_and_b32 s{sT0}, s{sW}, 1
    s_lshl_b32 s{sT0}, s{sT0}, 14
    s_add_u32 s{sT0}, s{sT0}, {WH1L}
    v_lshl_add_u32 v{T + 3}, v{vLane}, 4, s{sT0}
    ''')
    for s in range(8):
        if s:
            a(f'v_xor_b32 v{T + 4}, {32 * s}, v{T + 2}')
        a(f'ds_read_b128 {vr(H0 + 4 * s, 4)}, v{T + 4 if s else T + 2} offset:{HT2}')
        a(f'v_xor_b32 v{T + 5}, {8192 + 32 * s}, v{T + 2}')
        a(f'ds_read_b128 {vr(H1 + 4 * s, 4)}, v{T + 5} offset:{HT2}')
        if s >= 4:
            k = s - 4
            a(f's_waitcnt lgkmcnt(8)')
            a(mfma(AO, W1F + 4 * k, H0 + 4 * k, '0' if k == 0 else None))
            a(mfma(AO + 16, W1F + 4 * k, H1 + 4 * k, '0' if k == 0 else None))
    for k in range(4, 8):
        a(f'ds_read_b128 {vr(WB + 8 * (k - 4), 4)}, v{T + 3} offset:{2048 * (k - 4)}')
        a(f'ds_read_b128 {vr(WB + 8 * (k - 4) + 4, 4)}, v{T + 3} offset:{2048 * (k - 4) + 1024}')
        a(f's_waitcnt lgkmcnt(8)')
        a(mfma(AO, W1F + 4 * k, H0 + 4 * k))
        a(mfma(AO + 16, W1F + 4 * k, H1 + 4 * k))
    for s in range(8):
        a(f'ds_read_b128 {vr(W1F + 4 * s, 4)}, v{T + 3} offset:{8192 + 1024 * s}')
        a(f's_waitcnt lgkmcnt(8)')
        a(mfma(CC, H0 + 4 * s, WB + 4 * s, '0' if s == 0 else None))
    a(f'''
    s_mov_b32 s{sC0}, {NLOG2E:#x}
    s_mov_b32 s{sC0 + 1}, {NLOG2E:#x}
    s_lshl_b32 s{sT0}, s3, 5
    v_add_u32 v{T + 4}, s{sT0}, v{T}
    v_xor_b32 v{T + 5}, 32, v{T + 4}
    v_mul_u32_u24 v{T + 6}, {RS}, v{T + 4}
    v_mul_u32_u24 v{T + 7}, {RS}, v{T + 5}
    s_and_b32 s3, s{sW}, 3
    s_lshl_b32 s3, s3, 7
    v_lshl_add_u32 v{T + 1}, v{T + 1}, 4, s3
    v_add_u32 v{T + 6}, v{T + 6}, v{T + 1}
    v_add_u32 v{T + 7}, v{T + 7}, v{T + 1}
    s_movk_i32 s3, {NB}
    v_cmp_gt_u32 s[{sT0}:{sT0 + 1}], s3, v{T + 4}
    v_cmp_gt_u32 s[{sT2}:{sT2 + 1}], s3, v{T + 5}
    ''')
    for s in range(8):
        a(f's_waitcnt lgkmcnt({7 - s})')
        a(mfma(CC + 16, H0 + 4 * s, W1F + 4 * s, '0' if s == 0 else None))
    for r in range(0, 32, 2):
        a(f'v_pk_mul_f32 {vr(AO + r, 2)}, {vr(AO + r, 2)}, s[{sC0}:{sC0 + 1}]')
    a(f's_mov_b64 exec, s[{sT0}:{sT0 + 1}]')
    for jj in range(4):
        a(f'ds_write_b128 v{T + 6}, {vr(AO + 4 * jj, 4)} offset:{ATAB + 32 * jj}')
    a(f's_mov_b64 exec, s[{sT2}:{sT2 + 1}]')
    for jj in range(4):
        a(f'ds_write_b128 v{T + 7}, {vr(AO + 16 + 4 * jj, 4)} offset:{ATAB + 32 * jj}')
    a('s_mov_b64 exec, -1')
    for r in range(0, 32, 2):
        a(f'v_pk_mul_f32 {vr(CC + r, 2)}, {vr(CC + r, 2)}, s[{sC0}:{sC0 + 1}]')
    a('K2_NOGEMM:')
    stamp(a, 3)
    G4, RK = 0, 8
    a(f'''
    v_mov_b32 v16, 1
    v_mov_b32 v17, {CNT}
    s_add_u32 s3, s{sO}, 32
    v_cmp_lt_u32 vcc, s3, v{vX3}
    s_and_saveexec_b64 s[{sT0}:{sT0 + 1}], vcc
    ds_write_b32 v17, v16 offset:64
    s_mov_b64 exec, -1
    s_waitcnt vmcnt(0)
    ''')
    for x in range(8):
        a(f'v_lshrrev_b32 v{G4 + x}, 17, v{RCD + 2 * x}')
        a(f'v_and_b32 v{G4 + x}, 0x3c, v{G4 + x}')
        a(f'v_add_u32 v{24 + x}, {CNT}, v{G4 + x}')
    for x in range(8):
        a(f's_mov_b64 exec, s[{sMask + 2 * x}:{sMask + 2 * x + 1}]')
        a(f'ds_add_rtn_u32 v{RK + x}, v{24 + x}, v16')
    a(f'''
    s_mov_b64 exec, -1
    v_and_b32 v18, 15, v{vLane}
    v_lshl_add_u32 v18, v18, 2, v17
    s_waitcnt lgkmcnt(0)
    s_barrier
    ds_read_b32 v19, v18
    ds_read_b32 v20, v17 offset:64
    s_waitcnt lgkmcnt(0)
    v_add_u32 v19, 15, v19
    v_lshrrev_b32 v19, 4, v19
    v_readfirstlane_b32 s{sMore}, v20
    v_mov_b32 v{vGend}, v19
    v_mov_b32 v21, v19
    s_nop 0
    v_add_u32_dpp v{vGend}, v{vGend}, v{vGend} row_shr:1 row_mask:0xf bank_mask:0xf
    s_nop 1
    v_add_u32_dpp v{vGend}, v{vGend}, v{vGend} row_shr:2 row_mask:0xf bank_mask:0xf
    s_nop 1
    v_add_u32_dpp v{vGend}, v{vGend}, v{vGend} row_shr:4 row_mask:0xf bank_mask:0xf
    s_nop 1
    v_add_u32_dpp v{vGend}, v{vGend}, v{vGend} row_shr:8 row_mask:0xf bank_mask:0xf
    v_sub_u32 v19, v{vGend}, v19
    v_readlane_b32 s{sT}, v{vGend}, 15
    v_lshlrev_b32 v19, 7, v19
    v_add_u32 v19, {LIST}, v19
    s_cmp_gt_u32 s{sT}, {CAP // 16}
    s_cbranch_scc1 K2_OVER
    s_lshr_b32 s{sT0}, s{sT}, 3
    v_cmp_lt_u32 vcc, s{sT0}, v21
    s_and_b32 s{sSer}, vcc_lo, 0x1fff
    s_mov_b32 s{sFm}, s{sRound}
    s_mov_b32 s{sTail}, 0
    v_cmp_eq_u32 vcc, 0, v21
    s_and_b32 s3, vcc_lo, 0x1fff
    s_cbranch_scc0 K2_NOZERO
    s_cmp_eq_u32 s{sRound}, 0
    s_cbranch_scc0 K2_NOZERO
    s_call_b64 s[{sRet}:{sRet + 1}], K2_ZERO
    K2_NOZERO:
    ''')
    for x in range(8):
        a(f'ds_bpermute_b32 v{24 + x}, v{G4 + x}, v19')
    a(f'''
    s_lshr_b32 s{sT0}, s{sT}, 3
    s_and_b32 s{sT1}, s{sT}, 7
    s_mul_i32 s{sBeta}, s{sT0}, s{sW}
    s_min_u32 s{sT2}, s{sW}, s{sT1}
    s_add_u32 s{sBeta}, s{sBeta}, s{sT2}
    s_cmp_lt_u32 s{sW}, s{sT1}
    s_addc_u32 s{sEnd}, s{sBeta}, s{sT0}
    s_lshl_b32 s3, s{sBeta}, 7
    s_add_u32 s3, s3, {LIST}
    v_lshl_add_u32 v{vLidx}, v{vX0}, 3, s3
    v_lshl_add_u32 v{vLrec}, v{vLane}, 3, s3
    v_cmp_ge_u32 vcc, s{sBeta}, v{vGend}
    s_and_b32 vcc_lo, vcc_lo, 0x1fff
    s_bcnt1_i32_b32 s{sG}, vcc_lo
    s_waitcnt lgkmcnt(0)
    ''')
    for x in range(8):
        a(f'v_lshl_add_u32 v{24 + x}, v{RK + x}, 3, v{24 + x}')
    a(f'v_readlane_b32 s{sGend}, v{vGend}, s{sG}')
    for x in range(8):
        a(f's_mov_b64 exec, s[{sMask + 2 * x}:{sMask + 2 * x + 1}]')
        a(f'ds_write_b64 v{24 + x}, {vr(RCD + 2 * x, 2)}')
    a(f'''
    s_mov_b64 exec, -1
    s_waitcnt lgkmcnt(0)
    s_barrier
    ''')
    stamp(a, 4)
    a(f'''
    ds_read_b64 {vr(REC, 2)}, v{vLrec}
    ds_read_u16 v0, v{vLidx}
    ds_read_u16 v2, v{vLidx} offset:64
    ds_read_u16 v4, v{vLidx} offset:128
    ds_read_u16 v6, v{vLidx} offset:192
    ds_read_u16 v{IDX}, v{vLidx} offset:256
    v_mov_b32 v1, v{IDX + 1}
    v_mov_b32 v3, v{IDX + 1}
    v_mov_b32 v5, v{IDX + 1}
    v_mov_b32 v7, v{IDX + 1}
    s_add_u32 s3, s{sBeta}, 1
    s_cmp_lt_u32 s{sBeta}, s{sEnd}
    s_cselect_b32 s6, {N}, 0
    s_waitcnt lgkmcnt(5)
    ''')
    stage1(a)
    a('s_waitcnt lgkmcnt(1)')
    for t in range(4):
        if t == 2:
            a(f's_cmp_lt_u32 s3, s{sEnd}')
            a(f's_cselect_b32 s6, {N}, 0')
        a(f'buffer_load_dwordx4 {vr(GG + 8 * t, 4)}, v[{2 * t}:{2 * t + 1}], s[4:7], 0 idxen offen')
        a(f'buffer_load_dwordx4 {vr(GG + 8 * t + 4, 4)}, v[{2 * t}:{2 * t + 1}], s[4:7], 0 idxen offen offset:128')
    a(f'''
    v_mov_b64 {vr(ZZ, 2)}, 0
    v_mov_b64 v[8:9], 0
    v_mov_b64 v[10:11], 0
    s_nop 1
    ''')
    a(mfma(16, 8, 8, '0'))
    a(mfma(32, 8, 8, '0'))
    a(mfma(48, 8, 8, '0'))
    a(mfma(MM, 8, 8, '0'))
    a(f'''
    v_mov_b64 {vr(SF, 2)}, 0
    v_mov_b64 {vr(SF + 2, 2)}, 0
    v_mov_b64 {vr(PP, 2)}, 0
    v_mov_b64 {vr(PP + 2, 2)}, 0
    v_mov_b32 v{SAo}, v{vSw}
    s_waitcnt lgkmcnt(0)
    ''')
    a(mfma(0, SF, SF, '0'))
    a(f'''
    s_cmp_lt_u32 s{sBeta}, s{sEnd}
    s_cbranch_scc0 K2_WAVE_DONE
    s_waitcnt vmcnt(8)
    ''')
    stamp(a, 5)
    stage2(a)
    stage_w_aoff(a)
    stage_w_pair(a)
    stage_w_s(a)
    a(f'''
    ds_read_b128 {vr(AD, 4)}, v{vLaoff}
    s_mov_b64 exec, s[{sM0}:{sM0 + 1}]
    ds_read2_b32 {vr(PP, 2)}, v{vLpair} offset0:0 offset1:0
    s_mov_b64 exec, s[{sM1}:{sM1 + 1}]
    ds_read2_b32 {vr(PP + 2, 2)}, v{vLpair} offset0:0 offset1:0
    s_mov_b64 exec, -1
    s_waitcnt lgkmcnt(2)
    v_lshl_add_u64 {vr(AD, 2)}, {vr(AD, 2)}, 0, {vr(AB, 2)}
    v_lshl_add_u64 {vr(AD + 2, 2)}, {vr(AD + 2, 2)}, 0, {vr(AB, 2)}
    ''')
    for jj in range(4):
        a(f'ds_read_b128 {vr(D0 + 4 * jj, 4)}, v{AD + jj}')
    a(f'''
    ds_read_b128 {vr(AD, 4)}, v{vLaoff} offset:32
    s_waitcnt vmcnt(6) lgkmcnt(0)
    ''')
    a(mfma(D0, PP, QQ))
    a(mfma(D0, GG, I0))
    a(mfma(D0, GG + 4, I1))
    a(f'''
    v_lshl_add_u64 {vr(AD, 2)}, {vr(AD, 2)}, 0, {vr(AB, 2)}
    v_lshl_add_u64 {vr(AD + 2, 2)}, {vr(AD + 2, 2)}, 0, {vr(AB, 2)}
    s_nop 7
    ''')
    stamp(a, 6)
    a('.p2align 6')
    a('K2_LOOP:')
    for tau in range(8):
        slot(a, tau)
    a('s_branch K2_LOOP')
    a('K2_DRAIN:')
    a('s_nop 0')
    for c in range(4):
        a(mfma(ACC + 16 * c, SF, MM + 4 * c))
    a(f'''
    s_cmp_eq_u32 s{sBeta}, s{sGend}
    s_cselect_b32 s{sFm}, s{sFm}, 2
    s_cselect_b32 s{sTail}, 0, 1
    s_nop 8
    s_call_b64 s[{sRet}:{sRet + 1}], K2_FLUSH
    K2_WAVE_DONE:
    ''')
    stamp(a, 7)
    a(f'''
    s_cmp_lg_u32 s{sMode}, 0
    s_cselect_b32 s3, 3, 0
    s_cmp_lt_u32 s{sQ}, s3
    s_cselect_b32 s{sT3}, 1, 0
    s_or_b32 s3, s{sT3}, s{sMore}
    s_cbranch_scc1 K2_NOPRE
    ''')
    epi_prefetch(a)
    a(f'''
    K2_NOPRE:
    s_waitcnt lgkmcnt(0)
    s_barrier
    s_mov_b32 s{sGend}, 0
    K2_TAILS:
    s_cmp_eq_u32 s{sSer}, 0
    s_cselect_b32 s3, s{sW}, s{sGend}
    s_cmp_eq_u32 s3, s{sW}
    s_cselect_b32 s3, s{sTail}, 0
    s_cmp_eq_u32 s3, 0
    s_cbranch_scc1 K2_NOTAIL
    s_call_b64 s[{sRet}:{sRet + 1}], K2_FLUSH2
    K2_NOTAIL:
    s_cmp_eq_u32 s{sSer}, 0
    s_cbranch_scc1 K2_TAILD
    s_add_u32 s{sGend}, s{sGend}, 1
    s_cmp_lt_u32 s{sGend}, 8
    s_cbranch_scc0 K2_TAILD
    s_barrier
    s_branch K2_TAILS
    K2_TAILD:
    s_or_b32 s3, s{sT3}, s{sMore}
    s_cbranch_scc0 K2_EPI
    s_add_u32 s{sQ}, s{sQ}, 1
    s_cmp_lg_u32 s{sT3}, 0
    s_cbranch_scc1 K2_NEXT
    s_mov_b32 s{sMode}, 0
    s_mov_b32 s{sQ}, 0
    s_add_u32 s{sO}, s{sO}, 32
    K2_NEXT:
    s_mov_b32 s{sRound}, 1
    s_waitcnt vmcnt(0) lgkmcnt(0)
    s_barrier
    s_branch K2_ROUND
    K2_OVER:
    s_mov_b32 s{sMode}, 1
    s_mov_b32 s{sQ}, 0
    s_cmp_eq_u32 s{sRound}, 0
    s_cbranch_scc0 K2_NEXT
    s_call_b64 s[{sRet}:{sRet + 1}], K2_ZERO
    s_branch K2_NEXT
    K2_ZERO:
    ''')
    zero_acc(a)
    a(f's_setpc_b64 s[{sRet}:{sRet + 1}]')
    flush(a)
    HR, MB, WF, HL, HH = 192, 96, 128, 128, 144
    a('K2_EPI:')
    a('s_nop 1')
    a('s_waitcnt vmcnt(16)')
    a('s_barrier')
    stamp(a, 8)
    for s in range(8):
        a(f'ds_read_b128 {vr(8 * s, 4)}, v{vX1} offset:{MACC + 64 * s}')
        a(f'ds_read_b128 {vr(8 * s + 4, 4)}, v{vX1} offset:{MACC + 64 * s + 16}')
        a(f'ds_read_b128 {vr(WF + 8 * s, 4)}, v{vX0} offset:{1024 * s}')
        a(f'ds_read_b128 {vr(WF + 8 * s + 4, 4)}, v{vX0} offset:{8192 + 1024 * s}')
        if s >= 2:
            epi_step(a, s - 2, 8, MB, WF)
    epi_step(a, 6, 4, MB, WF)
    epi_step(a, 7, 0, MB, WF)
    a(f'''
    s_cmp_lt_u32 s{sW}, 2
    s_cbranch_scc0 K2_NOPOS
    v_lshlrev_b32 v0, 4, v{vT}
    v_add_u32 v1, {PD}, v0
    v_add_u32 v0, {PACC}, v0
    ds_read_b128 v[4:7], v1
    ds_read_b128 v[8:11], v0
    v_mul_u32_u24 v2, 6, v{vT}
    s_waitcnt lgkmcnt(0)
    v_add_f32 v4, v4, v8
    v_add_f32 v5, v5, v9
    v_add_f32 v6, v6, v10
    v_cvt_pk_bf16_f32 v4, v4, v5
    v_cvt_pk_bf16_f32 v6, v6, v6
    v_cmp_gt_u32 vcc, s{sNv}, v{vT}
    s_and_saveexec_b64 s[{sT2}:{sT2 + 1}], vcc
    s_cbranch_execz K2_NOPOS1
    buffer_store_short v4, v2, s[44:47], 0 offen {so}
    buffer_store_short_d16_hi v4, v2, s[44:47], 0 offen offset:2 {so}
    buffer_store_short v6, v2, s[44:47], 0 offen offset:4 {so}
    s_mov_b64 exec, -1
    s_waitcnt vmcnt(3)
    s_branch K2_HROK
    K2_NOPOS1:
    s_mov_b64 exec, -1
    K2_NOPOS:
    s_waitcnt vmcnt(0)
    K2_HROK:
    ''')
    for r in range(16):
        a(f'v_lshlrev_b32 v{HL + r}, 16, v{HR + r}')
        a(f'v_and_b32 v{HH + r}, 0xffff0000, v{HR + r}')
    for u in range(2):
        for r in range(16):
            a(f'v_exp_f32 v{16 * u + r}, v{CC + 16 * u + r}')
        for r in range(0, 16, 2):
            a(f'v_pk_add_f32 {vr(16 * u + r, 2)}, {vr(16 * u + r, 2)}, 1.0 op_sel_hi:[1,0]')
        for r in range(16):
            a(f'v_rcp_f32 v{16 * u + r}, v{16 * u + r}')
        for r in range(0, 16, 2):
            a(f'v_pk_mul_f32 {vr(16 * u + r, 2)}, {vr(16 * u + r, 2)}, {vr(CC + 16 * u + r, 2)}')
        for r in range(0, 16, 2):
            a(f'v_pk_fma_f32 {vr(16 * u + r, 2)}, {vr(16 * u + r, 2)}, s[{sC0}:{sC0 + 1}], {vr((HL, HH)[u] + r, 2)}')
    for r in range(16):
        jj, ii = r >> 2, r & 3
        a(f'v_cvt_pk_bf16_f32 v{32 + r}, v{r}, v{16 + r}')
        a(f'buffer_store_dword v{32 + r}, v{vX3}, s[20:23], s{sT0 if jj < 2 else sT1} offen offset:{(jj & 1) * 2048 + ii * 256} {so}')
    if OPT['stamps']:
        stamp(a, 9)
        a('s_waitcnt vmcnt(0)')
        stamp(a, 10)
        a(f'''
        s_lshl_b32 s3, s2, 3
        s_add_u32 s3, s3, s{sW}
        s_lshl_b32 s3, s3, 8
        s_add_u32 s3, s3, {0x1000000}
        ''')
        srd(a, 12, 42, 's3', 256)
        a(f'''
        v_lshlrev_b32 v0, 2, v{vLane}
        buffer_store_dword v{vX4}, v0, s[12:15], 0 offen
        ''')
    a('s_endpgm')


def epi_prefetch(a):
    HR = 192
    a(f'''
    v_lshlrev_b32 v{vX0}, 4, v{vLane}
    s_lshl_b32 s{sT0}, s{sW}, 12
    s_add_u32 m0, s{sT0}, {SBUF}
    s_add_u32 s{sT0}, s{sT0}, {WS_W - WS_REC + 65536}
    v_and_b32 v{vX1}, 31, v{vLane}
    v_lshrrev_b32 v{vX2}, 5, v{vLane}
    s_waitcnt lgkmcnt(0)
    ''')
    for i in range(4):
        a(f'buffer_load_dwordx4 v{vX0}, s[12:15], s{sT0} offen offset:{1024 * i} lds')
    a(f'''
    v_lshlrev_b32 v{vX3}, 10, v{vX2}
    v_lshl_add_u32 v{vX3}, v{vX1}, 2, v{vX3}
    s_lshr_b32 s3, s{sW}, 1
    s_lshl_b32 s{sT0}, s3, 13
    s_and_b32 s{sT2}, s{sW}, 1
    s_lshl_b32 s{sT1}, s{sT2}, 7
    s_add_u32 s{sT0}, s{sT0}, s{sT1}
    s_add_u32 s{sT1}, s{sT0}, 4096
    ''')
    for r in range(16):
        jj, ii = r >> 2, r & 3
        a(f'buffer_load_dword v{HR + r}, v{vX3}, s[16:19], s{sT0 if jj < 2 else sT1} offen offset:{(jj & 1) * 2048 + ii * 256}')
    a(f'''
    s_lshl_b32 s3, s3, 5
    v_add_u32 v{vX1}, s3, v{vX1}
    v_mul_u32_u24 v{vX1}, {RS}, v{vX1}
    v_lshl_add_u32 v{vX1}, v{vX2}, 5, v{vX1}
    s_lshl_b32 s{sT2}, s{sT2}, 14
    s_add_u32 s{sT2}, s{sT2}, {SBUF}
    v_add_u32 v{vX0}, s{sT2}, v{vX0}
    s_mov_b32 s{sC0}, {NLN2:#x}
    s_mov_b32 s{sC0 + 1}, {NLN2:#x}
    ''')


def epi_step(a, s, wait, MB, WF):
    a(f's_waitcnt lgkmcnt({wait})')
    for x in range(4):
        a(f'v_cvt_pk_bf16_f32 v{MB + 4 * s + x}, v{8 * s + 2 * x}, v{8 * s + 2 * x + 1}')
    a('s_nop 1')
    a(mfma(CC, MB + 4 * s, WF + 8 * s))
    a(mfma(CC + 16, MB + 4 * s, WF + 8 * s + 4))


def stage1(a):
    t = EE
    a(f'''
    v_and_b32 v{t}, 0xffff, v{REC}
    v_bfe_u32 v{t + 1}, v{REC}, 16, 7
    v_mul_u32_u24 v{t}, 6, v{t}
    v_lshlrev_b32 v{t + 1}, 4, v{t + 1}
    v_and_b32 v{t}, -4, v{t}
    v_add_u32 v{t + 1}, {PD}, v{t + 1}
    buffer_load_dwordx2 {vr(POSQ, 2)}, v{t}, s[8:11], 0 offen
    ds_read_b128 {vr(PD4, 4)}, v{t + 1}
    ''')


def stage2(a):
    t = EE
    a(f'''
    v_lshlrev_b32 v{t}, 4, v{REC}
    v_cmp_lt_i32 s[{sVal}:{sVal + 1}], -1, v{REC}
    v_alignbit_b32 v{t + 1}, v{POSQ + 1}, v{POSQ}, v{t}
    v_lshrrev_b32 v{t + 2}, v{t}, v{POSQ + 1}
    v_lshlrev_b32 v{t + 3}, 16, v{t + 1}
    v_and_b32 v{t + 4}, 0xffff0000, v{t + 1}
    v_lshlrev_b32 v{t + 5}, 16, v{t + 2}
    v_sub_f32 v{t + 3}, v{PD4}, v{t + 3}
    v_sub_f32 v{t + 4}, v{PD4 + 1}, v{t + 4}
    v_sub_f32 v{t + 5}, v{PD4 + 2}, v{t + 5}
    v_cvt_pk_bf16_f32 v{SN}, 1.0, v{t + 3}
    v_cvt_pk_bf16_f32 v{SN + 1}, v{t + 4}, v{t + 5}
    v_bfe_u32 v{t + 6}, v{REC}, 16, 7
    v_bfe_u32 v{t + 7}, v{REC}, 16, 3
    v_and_b32 v{t + 3}, 0xffff0000, v{SN}
    v_lshlrev_b32 v{t + 4}, 16, v{SN + 1}
    v_and_b32 v{t + 5}, 0xffff0000, v{SN + 1}
    v_mul_f32 v{t + 3}, v{t + 3}, v{t + 3}
    v_mul_f32 v{t + 4}, v{t + 4}, v{t + 4}
    v_mul_f32 v{t + 5}, v{t + 5}, v{t + 5}
    v_mul_u32_u24 v{PD4 + 3}, {RS}, v{t + 6}
    v_lshl_add_u32 v{SAn}, v{t + 7}, 3, v{vSw}
    v_cvt_pk_bf16_f32 v{t + 3}, v{t + 3}, v{t + 4}
    v_cvt_pk_bf16_f32 v{t + 5}, 0, v{t + 5}
    v_lshlrev_b32 v{t + 4}, 16, v{t + 3}
    v_and_b32 v{t + 3}, 0xffff0000, v{t + 3}
    v_add_f32 v{t + 3}, v{t + 4}, v{t + 3}
    v_add_f32 v{t + 3}, v{t + 3}, v{t + 5}
    v_cvt_pk_bf16_f32 v{PRn}, v{t + 3}, v{REC + 1}
    ''')


def stage_w_aoff(a):
    a(f'ds_write_b32 v{vStg}, v{PD4 + 3} offset:256')


def stage_w_pair(a):
    a(f'ds_write_b32 v{vStg}, v{PRn}')


def stage_w_s(a):
    a(f'''
    ds_write_b64 v{SAo}, {vr(ZZ, 2)}
    s_mov_b64 exec, s[{sVal}:{sVal + 1}]
    ds_write_b64 v{SAn}, {vr(SN, 2)}
    s_mov_b64 exec, -1
    ''')


def slot(a, tau):
    cur, nxt = (D0, D1) if tau % 2 == 0 else (D1, D0)
    even = tau % 2 == 0
    exps = [f'v_exp_f32 v{EE + r}, v{cur + r}' for r in range(16)]
    rcps = [f'v_rcp_f32 v{EE + r}, v{EE + r}' for r in range(16)]
    g = GG + 8 * (tau % 4)
    gn = GG + 8 * ((tau + 1) % 4)
    t1 = (tau + 1) % 8
    t2 = (tau + 2) % 8
    for jj in range(4):
        a(f'ds_read_b128 {vr(nxt + 4 * jj, 4)}, v{AD + jj}')
    k = 0
    if even:
        for c in range(4):
            a(mfma(ACC + 16 * c, SF, MM + 4 * c))
            if c == 0:
                a(f's_add_u32 s3, s{sBeta}, 2')
                a(f's_cmp_lt_u32 s3, s{sEnd}')
                a(f's_cselect_b32 s6, {N}, 0')
            for x in range(3):
                a(exps[k]); k += 1
    else:
        for x in range(2):
            a(exps[k]); k += 1
    a(f'''
    ds_read_b128 {vr(AD, 4)}, v{vLaoff} offset:{32 * t2}
    s_mov_b64 exec, s[{sM0}:{sM0 + 1}]
    ds_read2_b32 {vr(PP, 2)}, v{vLpair} offset0:{8 * t1} offset1:{8 * t1}
    s_mov_b64 exec, s[{sM1}:{sM1 + 1}]
    ds_read2_b32 {vr(PP + 2, 2)}, v{vLpair} offset0:{8 * t1} offset1:{8 * t1}
    s_mov_b64 exec, -1
    ''')
    if tau == 6:
        stage_w_pair(a)
    a(exps[k]); k += 1
    if tau == 1:
        a(f'buffer_load_dwordx2 {vr(POSQ, 2)}, v{SAn}, s[8:11], 0 offen')
        a(f'ds_read_b128 {vr(PD4, 4)}, v{PRn}')
    a(f'buffer_load_dwordx4 {vr(g, 4)}, {vr(IDX, 2)}, s[4:7], 0 idxen offen')
    a(exps[k]); k += 1
    a(f'buffer_load_dwordx4 {vr(g + 4, 4)}, {vr(IDX, 2)}, s[4:7], 0 idxen offen offset:128')
    a(f'ds_read_u16 v{IDX}, v{vLidx} offset:{64 * (tau + 5)}')
    if tau == 0:
        a(f'ds_read_b64 {vr(REC, 2)}, v{vLrec} offset:512')
    if not even:
        b = tau // 2
        a(f'ds_read_b64_tr_b16 {vr(SF, 2)}, v{vSr} offset:{1024 * b}')
        a(f'ds_read_b64_tr_b16 {vr(SF + 2, 2)}, v{vSr} offset:{1024 * b + 512}')
        if tau == 7:
            stage_w_s(a)
    while k < 16:
        a(exps[k]); k += 1
    for r in range(0, 16, 2):
        a(f'v_pk_add_f32 {vr(EE + r, 2)}, {vr(EE + r, 2)}, 1.0 op_sel_hi:[1,0]')
    a(f's_waitcnt vmcnt({7 if tau in (1, 2, 3) else 6}) lgkmcnt(0)')
    ms = [mfma(nxt, PP, QQ), mfma(nxt, gn, I0), mfma(nxt, gn + 4, I1)]
    k = 0
    for m in ms:
        a(m)
        for x in range(3):
            a(rcps[k]); k += 1
    while k < 16:
        a(rcps[k]); k += 1
    a(f'''
    v_lshl_add_u64 {vr(AD, 2)}, {vr(AD, 2)}, 0, {vr(AB, 2)}
    v_lshl_add_u64 {vr(AD + 2, 2)}, {vr(AD + 2, 2)}, 0, {vr(AB, 2)}
    ''')
    for r in range(0, 16, 2):
        a(f'v_pk_mul_f32 {vr(EE + r, 2)}, {vr(EE + r, 2)}, {vr(cur + r, 2)}')
    o = 0 if even else 2
    for c in range(4):
        a(f'v_cvt_pk_bf16_f32 v{MM + 4 * c + o}, v{EE + c}, v{EE + 4 + c}')
        a(f'v_cvt_pk_bf16_f32 v{MM + 4 * c + o + 1}, v{EE + 8 + c}, v{EE + 12 + c}')
    if tau == 0:
        a(f'''
        v_mov_b32 v{SAo}, v{SAn}
        v_and_b32 v{SAn}, 0xffff, v{REC}
        v_bfe_u32 v{PRn}, v{REC}, 16, 7
        v_mul_u32_u24 v{SAn}, 6, v{SAn}
        v_lshlrev_b32 v{PRn}, 4, v{PRn}
        v_and_b32 v{SAn}, -4, v{SAn}
        v_add_u32 v{PRn}, {PD}, v{PRn}
        ''')
    if tau == 5:
        stage2(a)
        stage_w_aoff(a)
    if tau == 7:
        a(f'v_add_u32 v{vLidx}, 512, v{vLidx}')
        a(f'v_add_u32 v{vLrec}, 512, v{vLrec}')
    if even:
        a(f'''
        s_cmp_eq_u32 s{sBeta}, s{sGend}
        s_cbranch_scc0 K2_NF{tau}
        s_call_b64 s[{sRet}:{sRet + 1}], K2_FLUSH
        K2_NF{tau}:
        ''')
    else:
        a(f'''
        s_add_u32 s{sBeta}, s{sBeta}, 1
        s_cmp_lt_u32 s{sBeta}, s{sEnd}
        s_cbranch_scc0 K2_DRAIN
        ''')


def flush(a):
    t = EE
    A = lambda c, jj, ii: ACC + 16 * c + 4 * jj + ii
    V1 = lambda jj: t + jj
    V23 = lambda jj: t + 4 + 2 * jj
    V = lambda jj, k: V1(jj) if k == 0 else V23(jj) + k - 1
    aM, aP, Y, Z = t + 12, t + 13, t + 14, t + 15
    a('K2_FLUSH:')
    a(f'''
    s_mul_i32 s3, s{sG}, {8 * RS}
    v_add_u32 v{aM}, s3, v{vFl}
    s_lshl_b32 s3, s{sG}, 7
    v_add_u32 v{aP}, s3, v{vFp}
    s_mov_b32 s{sGp}, s{sG}
    ''')
    for c in range(4):
        for jj in range(4):
            if c == 0:
                a(f'v_mul_f32 v{V1(jj)}, v{WX}, v{A(c, jj, 1)}')
            else:
                a(f'v_fmac_f32 v{V1(jj)}, v{WX + c}, v{A(c, jj, 1)}')
        wp = vr(WX + (c & ~1), 2)
        s = c & 1
        for jj in range(4):
            if c == 0:
                a(f'v_pk_mul_f32 {vr(V23(jj), 2)}, {vr(A(c, jj, 2), 2)}, {wp} op_sel:[0,{s}] op_sel_hi:[1,{s}]')
            else:
                a(f'v_pk_fma_f32 {vr(V23(jj), 2)}, {vr(A(c, jj, 2), 2)}, {wp}, {vr(V23(jj), 2)} op_sel:[0,{s},0] op_sel_hi:[1,{s},1]')
    a(f'v_cmp_ge_u32 vcc, s{sBeta}, v{vGend}')
    for p in range(2):
        for k in range(3):
            a(f'v_permlane16_swap_b32 v{V(2 * p, k)}, v{V(2 * p + 1, k)}')
    a(f'''
    s_and_b32 vcc_lo, vcc_lo, 0x1fff
    s_bcnt1_i32_b32 s{sG}, vcc_lo
    ''')
    for p in range(2):
        for k in range(3):
            a(f'v_add_f32 v{V(2 * p, k)}, v{V(2 * p, k)}, v{V(2 * p + 1, k)}')
    a(f'v_readlane_b32 s{sGend}, v{vGend}, s{sG}')
    for k in range(3):
        a(f'v_add_f32_dpp v{V(1, k)}, v{V(0, k)}, v{V(0, k)} row_ror:8 row_mask:0xf bank_mask:0x3')
    for k in range(3):
        a(f'v_add_f32_dpp v{V(1, k)}, v{V(2, k)}, v{V(2, k)} row_ror:8 row_mask:0xf bank_mask:0xc')
    a(f'''
    v_add_f32_dpp v{Y}, v{V(1, 0)}, v{V(1, 0)} row_half_mirror row_mask:0xf bank_mask:0x5
    s_nop 0
    v_add_f32_dpp v{Z}, v{V(1, 2)}, v{V(1, 2)} row_half_mirror row_mask:0xf bank_mask:0xf
    v_add_f32_dpp v{Y}, v{V(1, 1)}, v{V(1, 1)} row_half_mirror row_mask:0xf bank_mask:0xa
    s_cmp_eq_u32 s{sFm}, 2
    v_add_f32_dpp v{Z}, v{Z}, v{Z} quad_perm:[1,0,3,2] row_mask:0xf bank_mask:0xf
    v_add_f32_dpp v{Y}, v{Y}, v{Y} quad_perm:[1,0,3,2] row_mask:0xf bank_mask:0xf
    s_nop 0
    v_add_f32_dpp v{Z}, v{Z}, v{Z} quad_perm:[2,3,0,1] row_mask:0xf bank_mask:0xf
    v_add_f32_dpp v{Y}, v{Y}, v{Y} quad_perm:[2,3,0,1] row_mask:0xf bank_mask:0xf
    s_cbranch_scc1 K2_FLRET
    s_cmp_eq_u32 s{sFm}, 0
    s_cbranch_scc1 K2_FLW
    K2_FLUSH2:
    ds_read_b32 v{t + 8}, v{aP}
    ds_read_b32 v{t + 9}, v{aP} offset:8
    ''')
    for hf in range(2):
        for jj in (2 * hf, 2 * hf + 1):
            for c in range(4):
                a(f'ds_read_b32 v{t + 4 * (jj & 1) + c}, v{aM} offset:{128 * c + 2 * RS * jj}')
        a('s_waitcnt lgkmcnt(0)')
        for jj in (2 * hf, 2 * hf + 1):
            for c in range(4):
                a(f'v_add_f32 v{A(c, jj, 0)}, v{A(c, jj, 0)}, v{t + 4 * (jj & 1) + c}')
    a(f'''
    v_add_f32 v{Y}, v{Y}, v{t + 8}
    v_add_f32 v{Z}, v{Z}, v{t + 9}
    K2_FLW:
    v_mov_b64 {vr(t + 8, 2)}, 0
    v_mov_b64 {vr(t + 10, 2)}, 0
    ds_write_b32 v{aP}, v{Y}
    ds_write_b32 v{aP}, v{Z} offset:8
    ''')
    for c in range(4):
        a(f'ds_write_b32 v{aM}, v{A(c, 0, 0)} offset:{128 * c}')
    a(f'''
    s_cmp_eq_u32 s{sGp}, 12
    s_cbranch_scc1 K2_FL1
    ''')
    for jj in range(1, 4):
        for c in range(4):
            a(f'ds_write_b32 v{aM}, v{A(c, jj, 0)} offset:{128 * c + 2 * RS * jj}')
    a('K2_FL1:')
    a(f's_cmp_eq_u32 s{sFm}, 2')
    a('s_waitcnt lgkmcnt(0)')
    a('s_cbranch_scc1 K2_FLRET')
    for c in range(4):
        a(mfma(ACC + 16 * c, t + 8, t + 8, '0'))
    a('K2_FLRET:')
    a(f's_setpc_b64 s[{sRet}:{sRet + 1}]')


def zero_acc(a):
    nz = (SPARE - MACC) // 16
    a(f'''
    v_mov_b64 v[32:33], 0
    v_mov_b64 v[34:35], 0
    v_lshlrev_b32 v36, 4, v{vT}
    v_add_u32 v36, {MACC}, v36
    ''')
    for i in range(nz // 512):
        a(f'ds_write_b128 v36, v[32:35] offset:{8192 * i}')
    a(f'''
    s_movk_i32 s3, {nz % 512}
    v_cmp_gt_u32 vcc, s3, v{vT}
    s_and_saveexec_b64 s[{sT0}:{sT0 + 1}], vcc
    ds_write_b128 v36, v[32:35] offset:{8192 * (nz // 512)}
    s_mov_b64 exec, -1
    ''')


def kd(name, vgpr, sgpr):
    return f'''.section .rodata,"a"
.p2align 6
.amdhsa_kernel {name}
  .amdhsa_next_free_vgpr {vgpr}
  .amdhsa_next_free_sgpr {sgpr}
  .amdhsa_accum_offset {(vgpr + 3) // 4 * 4}
  .amdhsa_group_segment_fixed_size 0
  .amdhsa_kernarg_size 88
  .amdhsa_user_sgpr_count 2
  .amdhsa_user_sgpr_kernarg_segment_ptr 1
  .amdhsa_system_sgpr_workgroup_id_x 1
  .amdhsa_float_denorm_mode_32 3
.end_amdhsa_kernel
'''


HEADER = f'''; EGNN layer: K1 bins the edges by destination bucket and builds B = h @ W2; K2 does the edge MLP,
; @launch kernel=egnn_k1_kernel grid=({K1_GRID},1,1) block=(512,1,1) lds=65536
; @launch kernel=egnn_k2_kernel grid=(256,1,1) block=(512,1,1) lds={LDS_TOTAL}
.amdgcn_target "amdgcn-amd-amdhsa--gfx950"
.text
'''


def build(**opt):
    OPT.update(opt)
    a = Asm()
    gen_k1(a)
    gen_k2(a)
    return HEADER + a.text() + kd('egnn_k1_kernel', 104, 64) + kd('egnn_k2_kernel', 256, 96)


if __name__ == '__main__':
    out = sys.argv[1] if len(sys.argv) > 1 else 'gather_scatter__cheap_equivariant_egnn__graph.s'
    opt = {}
    for x in sys.argv[2:]:
        k, v = x.split('=', 1)
        opt[k] = {'True': True, 'False': False}.get(v, v)
    open(out, 'w').write(build(**opt))
```

```python
import sys

N = 25000
E = 400000
NB = 98
NCH = 128
CH = 3128
CHB = CH * 8
WS_B = 0
WS_REC = 0x640000
WS_OFF = 0x960000
WS_W = 0x990000
WS_END = WS_W + 3 * 32768 + 4096
NLOG2E = 0xBFB8AA3B
NLN2 = 0xBF317218

OPT = dict(stamps=False, st_k1='sc1', st_out='', )


class Asm:
    def __init__(self):
        self.l = []

    def __call__(self, s):
        for x in s.split('\n'):
            x = x.strip()
            if x:
                self.l.append(x)

    def text(self):
        return '\n'.join((x if x.endswith(':') or x.startswith('.') else '    ' + x) for x in self.l) + '\n'


def vr(a, n):
    return f'v[{a}:{a + n - 1}]' if n > 1 else f'v{a}'


def sr(a, n):
    return f's[{a}:{a + n - 1}]' if n > 1 else f's{a}'


def srd(a, d, base, off, nrec, stride=0):
    if off == 0:
        a(f's_mov_b32 s{d}, s{base}')
        if stride:
            a(f's_or_b32 s{d + 1}, s{base + 1}, {stride << 16:#x}')
        else:
            a(f's_mov_b32 s{d + 1}, s{base + 1}')
    else:
        a(f's_add_u32 s{d}, s{base}, {off}')
        a(f's_addc_u32 s{d + 1}, s{base + 1}, 0')
        assert not stride
    a(f's_mov_b32 s{d + 2}, {nrec}')
    a(f's_mov_b32 s{d + 3}, 0x20000')


def mfma(d, A, B, C=None):
    c = vr(d, 16) if C is None else C
    return f'v_mfma_f32_32x32x16_bf16 {vr(d, 16)}, {vr(A, 4)}, {vr(B, 4)}, {c}'


K1_BIN, K1_GEMM, K1_PREP = NCH, 196, 13
K1_GRID = K1_BIN + K1_GEMM + K1_PREP


def gen_k1(a):
    st = OPT['st_k1']
    a('.p2align 8')
    a('.globl egnn_k1_kernel')
    a('.type egnn_k1_kernel,@function')
    a('egnn_k1_kernel:')
    a(f'''
    s_load_dwordx16 s[36:51], s[0:1], 0
    s_load_dwordx2 s[52:53], s[0:1], 80
    s_cmp_lt_u32 s2, {K1_BIN}
    s_cbranch_scc1 K1_BIN
    s_cmp_lt_u32 s2, {K1_BIN + K1_GEMM}
    s_cbranch_scc1 K1_GEMM
    s_cmp_lt_u32 s2, {K1_GRID - 1}
    s_cbranch_scc1 K1_PREP
    s_cmp_lt_u32 s2, {K1_GRID}
    s_cbranch_scc1 K1_CONST
    s_endpgm
    ''')
    HIST, BASE, SORTED = 0, 1024, 2048
    a('K1_BIN:')
    a(f'''
    v_lshlrev_b32 v1, 2, v0
    v_mov_b32 v2, 0
    s_mul_i32 s3, s2, {CH}
    v_add_u32 v3, s3, v1
    v_add_u32 v4, {391 * 4}, v3
    v_cmp_gt_u32 vcc, 256, v0
    s_and_saveexec_b64 s[20:21], vcc
    ds_write_b32 v1, v2 offset:{HIST}
    s_mov_b64 exec, s[20:21]
    s_mov_b32 s22, {E}
    v_cmp_gt_u32 s[24:25], s22, v3
    v_cmp_gt_u32 s[26:27], s22, v4
    v_cmp_gt_u32 vcc, 391, v0
    v_mov_b32 v5, 0x7fffff00
    s_and_b64 s[24:25], s[24:25], vcc
    s_and_b64 s[26:27], s[26:27], vcc
    v_lshlrev_b32 v6, 2, v3
    v_lshlrev_b32 v7, 2, v4
    v_lshlrev_b32 v8, 1, v3
    v_lshlrev_b32 v9, 1, v4
    v_cndmask_b32_e64 v6, v5, v6, s[24:25]
    v_cndmask_b32_e64 v7, v5, v7, s[26:27]
    v_cndmask_b32_e64 v8, v5, v8, s[24:25]
    v_cndmask_b32_e64 v9, v5, v9, s[26:27]
    s_waitcnt lgkmcnt(0)
    ''')
    srd(a, 4, 44, 0, E * 4)
    srd(a, 8, 42, 0, E * 4)
    srd(a, 12, 40, 0, E * 2)
    DST, SRC, EA, BK, RK, RC = 12, 20, 28, 32, 40, 48
    a(f'''
    buffer_load_dwordx4 {vr(DST, 4)}, v6, s[4:7], 0 offen
    buffer_load_dwordx4 {vr(DST + 4, 4)}, v7, s[4:7], 0 offen
    buffer_load_dwordx4 {vr(SRC, 4)}, v6, s[8:11], 0 offen
    buffer_load_dwordx4 {vr(SRC + 4, 4)}, v7, s[8:11], 0 offen
    buffer_load_dwordx2 {vr(EA, 2)}, v8, s[12:15], 0 offen
    buffer_load_dwordx2 {vr(EA + 2, 2)}, v9, s[12:15], 0 offen
    s_mul_i32 s3, s2, {CHB}
    s_add_u32 s3, s3, {WS_REC}
    ''')
    srd(a, 16, 52, 's3', CHB)
    a(f'''
    s_lshl_b32 s3, s2, 10
    s_add_u32 s3, s3, {WS_OFF}
    ''')
    srd(a, 28, 52, 's3', 1024)
    a(f'''
    s_movk_i32 s22, 21400
    s_movk_i32 s23, -98
    v_mov_b32 v10, 1
    s_barrier
    s_waitcnt vmcnt(4)
    ''')
    for i in range(8):
        a(f'v_mul_u32_u24 v{BK + i}, s22, v{DST + i}')
    for i in range(8):
        a(f'v_lshrrev_b32 v{BK + i}, 21, v{BK + i}')
    for i in range(8):
        a(f'v_mad_i32_i24 v{DST + i}, v{BK + i}, s23, v{DST + i}')
    for i in range(8):
        a(f'v_lshlrev_b32 v{BK + i}, 2, v{BK + i}')
    for g in range(2):
        a(f's_mov_b64 exec, s[{24 + 2 * g}:{25 + 2 * g}]')
        for i in range(4 * g, 4 * g + 4):
            a(f'ds_add_rtn_u32 v{RK + i}, v{BK + i}, v10 offset:{HIST}')
    a('s_mov_b64 exec, -1')
    a('s_waitcnt vmcnt(0)')
    for i in range(8):
        a(f'v_lshl_or_b32 v{RC + 2 * i}, v{DST + i}, 16, v{SRC + i}')
        if i & 1:
            a(f'v_and_b32 v{RC + 2 * i + 1}, 0xffff0000, v{EA + i // 2}')
        else:
            a(f'v_lshlrev_b32 v{RC + 2 * i + 1}, 16, v{EA + i // 2}')
    a(f'''
    v_and_b32 v1, 63, v0
    v_lshlrev_b32 v1, 4, v1
    s_waitcnt lgkmcnt(0)
    s_barrier
    ds_read_b128 v[4:7], v1 offset:{HIST}
    s_waitcnt lgkmcnt(0)
    v_add_u32 v12, v4, v5
    v_add3_u32 v14, v12, v6, v7
    v_add_u32 v13, v12, v6
    v_mov_b32 v15, v14
    s_nop 1
    v_add_u32_dpp v15, v15, v15 row_shr:1 row_mask:0xf bank_mask:0xf
    s_nop 1
    v_add_u32_dpp v15, v15, v15 row_shr:2 row_mask:0xf bank_mask:0xf
    s_nop 1
    v_add_u32_dpp v15, v15, v15 row_shr:4 row_mask:0xf bank_mask:0xf
    s_nop 1
    v_add_u32_dpp v15, v15, v15 row_shr:8 row_mask:0xf bank_mask:0xf
    s_nop 1
    v_add_u32_dpp v15, v15, v15 row_bcast:15 row_mask:0xa bank_mask:0xf
    s_nop 1
    v_add_u32_dpp v15, v15, v15 row_bcast:31 row_mask:0xc bank_mask:0xf
    v_sub_u32 v16, v15, v14
    v_add_u32 v17, v16, v4
    v_add_u32 v18, v16, v12
    v_add_u32 v19, v16, v13
    ds_write_b128 v1, v[16:19] offset:{BASE}
    ''')
    for i in range(8):
        a(f'ds_read_b32 v{20 + i}, v{BK + i} offset:{BASE}')
    a(f'''
    v_lshl_or_b32 v16, v4, 16, v16
    v_lshl_or_b32 v17, v5, 16, v17
    v_lshl_or_b32 v18, v6, 16, v18
    v_lshl_or_b32 v19, v7, 16, v19
    v_lshlrev_b32 v1, 4, v0
    buffer_store_dwordx4 v[16:19], v1, s[28:31], 0 offen {st}
    s_waitcnt lgkmcnt(0)
    ''')
    for i in range(8):
        a(f'v_add_lshl_u32 v{20 + i}, v{20 + i}, v{RK + i}, 3')
    for g in range(2):
        a(f's_mov_b64 exec, s[{24 + 2 * g}:{25 + 2 * g}]')
        for i in range(4 * g, 4 * g + 4):
            a(f'ds_write_b64 v{20 + i}, {vr(RC + 2 * i, 2)} offset:{SORTED}')
    a(f'''
    s_mov_b64 exec, -1
    s_movk_i32 s20, 8192
    s_movk_i32 s21, 16384
    s_movk_i32 s22, 24576
    s_waitcnt lgkmcnt(0)
    s_barrier
    ''')
    for i in range(4):
        a(f'ds_read_b128 {vr(4 + 4 * i, 4)}, v1 offset:{SORTED + 8192 * i}')
    for i in range(4):
        a(f's_waitcnt lgkmcnt({3 - i})')
        a(f'buffer_store_dwordx4 {vr(4 + 4 * i, 4)}, v1, s[16:19], {["0", "s20", "s21", "s22"][i]} offen {st}')
    a('s_endpgm')

    HT, WT = 0, 32768
    a('K1_GEMM:')
    a(f'''
    v_lshrrev_b32 v1, 6, v0
    v_and_b32 v0, 63, v0
    v_readfirstlane_b32 s24, v1                 ; wave
    s_sub_u32 s3, s2, {K1_BIN}
    s_lshl_b32 s20, s3, 15
    s_sub_u32 s21, {N * 256}, s20
    s_min_u32 s21, s21, 32768
    v_lshrrev_b32 v2, 4, v0
    v_and_b32 v3, 15, v0                        ; slot
    s_and_b32 s25, s24, 3
    s_lshl_b32 s25, s25, 2
    v_add_u32 v4, s25, v2                       ; row & 15
    v_xor_b32 v4, v4, v3
    v_lshlrev_b32 v4, 4, v4
    v_lshl_add_u32 v4, v2, 8, v4
    v_lshlrev_b32 v5, 2, v2
    v_xor_b32 v5, v5, v3
    v_lshlrev_b32 v5, 4, v5
    v_lshl_add_u32 v5, v2, 8, v5
    s_lshl_b32 s26, s24, 10
    s_waitcnt lgkmcnt(0)
    ''')
    srd(a, 4, 36, 's20', 's21')
    srd(a, 8, 46, 128 * 256, 32768)
    srd(a, 12, 52, 's20', 's21')
    for i in range(4):
        a(f'''
        s_add_u32 s27, s26, {8192 * i}
        s_add_u32 m0, s26, {HT + 8192 * i}
        s_add_u32 s28, s26, {WT + 8192 * i}
        buffer_load_dwordx4 v4, s[4:7], s27 offen lds
        s_mov_b32 m0, s28
        s_nop 0
        buffer_load_dwordx4 v5, s[8:11], s27 offen lds
        ''')
    a(f'''
    s_lshr_b32 s29, s24, 1                      ; nt
    s_and_b32 s30, s24, 1                       ; ch
    v_and_b32 v6, 31, v0                        ; i
    v_lshrrev_b32 v7, 5, v0                     ; h
    v_xor_b32 v8, v7, v3                        ; h ^ (i&15)
    v_lshlrev_b32 v8, 4, v8
    v_lshl_add_u32 v8, v6, 8, v8
    s_lshl_b32 s31, s29, 13
    v_add_u32 v8, s31, v8
    v_lshrrev_b32 v9, 2, v3                     ; r
    v_lshl_add_u32 v10, v7, 3, v9               ; 8h + r
    v_lshlrev_b32 v10, 8, v10
    v_and_b32 v11, 1, v2                        ; gq&1
    v_lshl_add_u32 v10, v11, 5, v10
    v_and_b32 v11, 3, v0                        ; cc
    v_lshl_add_u32 v10, v11, 3, v10
    s_lshl_b32 s31, s30, 1
    v_xor_b32 v11, s31, v9                      ; ct0 ^ r
    v_lshl_add_u32 v12, v11, 6, v10
    v_xor_b32 v13, 64, v12
    ''')
    for s in range(1, 8):
        a(f'v_xor_b32 v{16 + s}, {32 * s}, v8')
    a(f'''
    v_lshlrev_b32 v14, 10, v7
    v_lshl_add_u32 v14, v6, 2, v14
    s_lshl_b32 s31, s29, 13
    s_lshl_b32 s33, s30, 7
    s_add_u32 s31, s31, s33
    s_add_u32 s32, s31, 4096
    s_mov_b32 s34, {NLOG2E:#x}
    s_mov_b32 s35, {NLOG2E:#x}
    s_waitcnt vmcnt(0)
    s_barrier
    ''')
    H, W0, W1, D0, D1 = 24, 40, 56, 72, 88
    for s in range(8):
        q = 4 * (s & 3)
        a(f'ds_read_b128 {vr(H + q, 4)}, v{8 if s == 0 else 16 + s} offset:{HT}')
        for rr in range(2):
            a(f'ds_read_b64_tr_b16 {vr(W0 + q + 2 * rr, 2)}, v12 offset:{WT + 4096 * s + 1024 * rr}')
        for rr in range(2):
            a(f'ds_read_b64_tr_b16 {vr(W1 + q + 2 * rr, 2)}, v13 offset:{WT + 4096 * s + 1024 * rr}')
        if s >= 2:
            k = s - 2
            q = 4 * (k & 3)
            a('s_waitcnt lgkmcnt(10)')
            a(mfma(D0, H + q, W0 + q, '0' if k == 0 else None))
            a(mfma(D1, H + q, W1 + q, '0' if k == 0 else None))
    for k in (6, 7):
        q = 4 * (k & 3)
        a(f's_waitcnt lgkmcnt({5 * (7 - k)})')
        a(mfma(D0, H + q, W0 + q))
        a(mfma(D1, H + q, W1 + q))
    a('s_nop 10')
    for r in range(0, 16, 2):
        a(f'v_pk_mul_f32 {vr(D0 + r, 2)}, {vr(D0 + r, 2)}, s[34:35]')
    for r in range(0, 16, 2):
        a(f'v_pk_mul_f32 {vr(D1 + r, 2)}, {vr(D1 + r, 2)}, s[34:35]')
    for r in range(16):
        a(f'v_cvt_pk_bf16_f32 v{24 + r}, v{D0 + r}, v{D1 + r}')
        jj, ii = r >> 2, r & 3
        a(f'buffer_store_dword v{24 + r}, v14, s[12:15], {"s31" if jj < 2 else "s32"} offen offset:{(jj & 1) * 2048 + ii * 256} {st}')
    a('s_endpgm')

    a('K1_PREP:')
    a(f'''
    s_sub_u32 s3, s2, {K1_BIN + K1_GEMM}
    s_lshr_b32 s20, s3, 2                       ; matrix
    s_and_b32 s21, s3, 3                        ; tile
    v_lshrrev_b32 v1, 6, v0                     ; s
    v_and_b32 v2, 31, v0                        ; i
    v_bfe_u32 v3, v0, 5, 1                      ; h
    ; column
    s_lshr_b32 s22, s21, 1
    s_lshl_b32 s22, s22, 6
    s_and_b32 s23, s21, 1
    s_cmp_eq_u32 s20, 0
    s_cbranch_scc0 K1_PREP_C1
    s_lshl_b32 s23, s23, 4
    v_bfe_u32 v4, v2, 2, 1
    v_lshlrev_b32 v4, 5, v4
    v_and_b32 v5, 3, v2
    v_lshl_add_u32 v4, v5, 2, v4
    v_lshrrev_b32 v5, 3, v2
    v_add_u32 v4, v4, v5
    s_branch K1_PREP_C2
    K1_PREP_C1:
    v_lshlrev_b32 v4, 1, v2
    K1_PREP_C2:
    s_add_u32 s22, s22, s23
    v_add_u32 v4, s22, v4                       ; column
    v_lshlrev_b32 v5, 4, v1
    v_lshl_add_u32 v5, v3, 3, v5                ; 16s+8h
    s_movk_i32 s24, 256
    s_movk_i32 s25, 512
    s_cmp_eq_u32 s20, 2
    s_cbranch_scc0 K1_PREP_R
    v_and_b32 v5, 1, v1
    v_lshlrev_b32 v5, 6, v5
    v_lshl_add_u32 v5, v3, 4, v5
    v_lshrrev_b32 v6, 1, v1
    v_lshl_add_u32 v5, v6, 2, v5
    v_add_u32 v5, 128, v5
    s_movk_i32 s24, 8192
    s_movk_i32 s25, 256
    K1_PREP_R:
    v_lshlrev_b32 v5, 8, v5
    v_lshl_add_u32 v5, v4, 1, v5
    s_waitcnt lgkmcnt(0)
    s_cmp_eq_u32 s20, 0
    s_cselect_b32 s4, s46, s50
    s_cselect_b32 s5, s47, s51
    s_mov_b32 s6, 65540
    s_mov_b32 s7, 0x20000
    s_lshl_b32 s3, s3, 13
    s_add_u32 s3, s3, {WS_W}
    ''')
    srd(a, 8, 52, 's3', 8192)
    a('s_mov_b32 s26, 0')
    for x in range(4):
        a(f'''
        s_add_u32 s27, s26, s24
        buffer_load_ushort v{8 + x}, v5, s[4:7], s26 offen
        buffer_load_ushort v{12 + x}, v5, s[4:7], s27 offen
        s_add_u32 s26, s26, s25
        ''')
    a(f'''
    v_lshlrev_b32 v1, 4, v0
    s_waitcnt vmcnt(0)
    v_lshl_or_b32 v8, v12, 16, v8
    v_lshl_or_b32 v9, v13, 16, v9
    v_lshl_or_b32 v10, v14, 16, v10
    v_lshl_or_b32 v11, v15, 16, v11
    buffer_store_dwordx4 v[8:11], v1, s[8:11], 0 offen {st}
    s_endpgm
    ''')
    a('K1_CONST:')
    a(f'''
    v_readfirstlane_b32 s3, v0
    s_nop 3
    s_cmp_lt_u32 s3, 64
    s_cbranch_scc0 K1_END
    v_and_b32 v2, 31, v0                        ; j
    v_lshrrev_b32 v3, 5, v0                     ; h
    v_lshrrev_b32 v4, 4, v2
    v_lshlrev_b32 v4, 6, v4
    v_and_b32 v5, 1, v2
    v_lshl_add_u32 v4, v5, 5, v4
    v_bfe_u32 v5, v2, 3, 1
    v_lshl_add_u32 v4, v5, 4, v4
    v_bfe_u32 v5, v2, 1, 2
    v_add_u32 v4, v4, v5                        ; feature(0,j)
    v_lshlrev_b32 v4, 1, v4
    v_lshl_add_u32 v5, v3, 4, v4
    s_waitcnt lgkmcnt(0)
    ''')
    srd(a, 4, 46, 65536, 516)
    srd(a, 8, 48, 0, 260)
    srd(a, 12, 52, WS_W + 3 * 32768, 4096)
    a(f'''
    buffer_load_ushort v8, v5, s[4:7], 0 offen
    buffer_load_ushort v9, v5, s[4:7], 0 offen offset:256
    buffer_load_ushort v10, v5, s[4:7], 0 offen offset:8
    buffer_load_ushort v11, v5, s[4:7], 0 offen offset:264
    buffer_load_ushort v12, v4, s[8:11], 0 offen
    buffer_load_ushort v13, v4, s[8:11], 0 offen offset:8
    buffer_load_ushort v14, v4, s[8:11], 0 offen offset:16
    buffer_load_ushort v15, v4, s[8:11], 0 offen offset:24
    v_lshlrev_b32 v1, 4, v0
    v_lshlrev_b32 v6, 3, v3
    v_sub_u32 v6, v2, v6                        ; d = j - 8h
    v_and_b32 v7, 1, v2
    v_lshlrev_b32 v7, 4, v7
    v_mov_b32 v16, 0x3f80
    v_lshlrev_b32 v7, v7, v16
    v_ashrrev_i32 v6, 1, v6
    ''')
    for x in range(8):
        sel = x if x < 4 else x + 4
        a(f'''
        v_cmp_eq_u32 vcc, {sel}, v6
        s_nop 1
        v_cndmask_b32_e64 v{20 + x}, 0, v7, vcc
        ''')
    a(f'''
    buffer_store_dwordx4 v[20:23], v1, s[12:15], 0 offen {st}
    buffer_store_dwordx4 v[24:27], v1, s[12:15], 0 offen offset:1024 {st}
    s_mov_b32 s20, {NLOG2E:#x}
    s_mov_b32 s21, {NLN2:#x}
    s_waitcnt vmcnt(2)
    ''')
    for x in range(8):
        a(f'v_lshlrev_b32 v{8 + x}, 16, v{8 + x}')
    for x in range(4):
        a(f'v_mul_f32 v{8 + x}, s20, v{8 + x}')
        a(f'v_mul_f32 v{12 + x}, s21, v{12 + x}')
    a(f'''
    v_cvt_pk_bf16_f32 v28, v8, v9
    v_cvt_pk_bf16_f32 v30, v10, v11
    v_lshlrev_b32 v16, 16, v28
    v_and_b32 v17, 0xffff0000, v28
    v_lshlrev_b32 v18, 16, v30
    v_and_b32 v19, 0xffff0000, v30
    v_sub_f32 v8, v8, v16
    v_sub_f32 v9, v9, v17
    v_sub_f32 v10, v10, v18
    v_sub_f32 v11, v11, v19
    v_cvt_pk_bf16_f32 v29, v8, v9
    v_cvt_pk_bf16_f32 v31, v10, v11
    buffer_store_dwordx4 v[28:31], v1, s[12:15], 0 offen offset:2048 {st}
    buffer_store_dwordx4 v[12:15], v1, s[12:15], 0 offen offset:3072 {st}
    K1_END:
    s_endpgm
    ''')


RS = 528
ATAB = 0
MACC = NB * RS
STG = 2 * NB * RS
PACC = STG + 4096
SPARE = PACC + 1664
PD = 110112
CNT = PD + 1568
LIST = CNT + 128
CAP = 2048
SBUF = LIST + (CAP + 128) * 8
LDS_TOTAL = SBUF + 32768
HT2 = MACC
WH1L = HT2 + 25600
assert WH1L + 32768 <= PD and SPARE <= PD and LDS_TOTAL <= 163840

ACC, CC, D0, D1, EE, MM, GG = 0, 64, 96, 112, 128, 144, 160
SF, PP, I0, I1, QQ, WX = 192, 196, 200, 204, 208, 212
IDX, AD, AB = 216, 218, 222
vLidx, vLpair, vLaoff, vSr, vSw, vLrec, vStg, vFl, vFp, vGend = range(224, 234)
REC, POSQ, PD4, SN, SAn, SAo, PRn, ZZ = 234, 236, 238, 242, 244, 245, 246, 248
vLane, vX0, vX1, vX2, vT, vX4 = 250, 251, 252, 253, 254, 255
vX3 = AD
RCD = 234

sB, sW, sRound, sMode, sQ, sO, sMore = 24, 25, 26, 27, 28, 29, 30
sBeta, sEnd, sG, sGend, sT = 31, 32, 33, 34, 35
sRet = 54
sM0, sM1, sVal = 56, 58, 60
sMask = 64
sC0 = 80
sT0, sT1, sT2, sT3 = 82, 83, 84, 85
sN0 = 86
sGp, sFm, sTail, sSer = 48, 49, 50, 51
sNv = 87
sStamp = 88


def stamp(a, k):
    if OPT['stamps']:
        a(f's_memtime s[{sStamp}:{sStamp + 1}]')
        a('s_waitcnt lgkmcnt(0)')
        a(f'v_writelane_b32 v{vX4}, s{sStamp}, {k}')


def gen_k2(a):
    so = OPT['st_out']
    a('.p2align 8')
    a('.globl egnn_k2_kernel')
    a('.type egnn_k2_kernel,@function')
    a('egnn_k2_kernel:')
    a(f'''
    s_cmp_lt_u32 s2, 256
    s_cbranch_scc1 K2_GO
    s_endpgm
    K2_GO:
    s_load_dwordx4 s[36:39], s[0:1], 0
    s_load_dwordx2 s[40:41], s[0:1], 64
    s_load_dwordx2 s[42:43], s[0:1], 80
    ''')
    if OPT['stamps']:
        a(f'v_mov_b32 v{vX4}, 0')
        a(f's_memtime s[{sStamp + 2}:{sStamp + 3}]')
        a(f's_memrealtime s[{sStamp + 4}:{sStamp + 5}]')
    a(f'''
    v_mov_b32 v{vT}, v0
    v_lshrrev_b32 v1, 6, v0
    v_and_b32 v{vLane}, 63, v0
    v_readfirstlane_b32 s{sW}, v1
    s_and_b32 s3, s2, 7
    s_lshl_b32 s3, s3, 5
    s_lshr_b32 s{sB}, s2, 3
    s_add_u32 s{sB}, s{sB}, s3
    s_mul_i32 s{sN0}, s{sB}, {NB}
    s_mov_b32 s{sRound}, 0
    s_mov_b32 s{sMode}, 0
    s_mov_b32 s{sQ}, 0
    s_mov_b32 s{sO}, 0
    s_sub_u32 s3, {N}, s{sN0}
    s_min_u32 s3, s3, {NB}
    s_lshl_b32 s{sT0}, s{sN0}, 8
    s_lshl_b32 s{sT1}, s3, 8
    s_mul_i32 s{sT2}, s{sN0}, 6
    s_add_u32 s{sT2}, s{sT2}, {N * 256}
    s_mul_i32 s{sT3}, s3, 6
    s_add_u32 s{sT3}, s{sT3}, 2
    s_mov_b32 s{sNv}, s3
    s_waitcnt lgkmcnt(0)
    ''')
    if OPT['stamps']:
        a(f'v_writelane_b32 v{vX4}, s{sStamp + 2}, 0')
    srd(a, 12, 42, WS_REC, WS_END - WS_REC)
    srd(a, 4, 42, 0, N, stride=256)
    srd(a, 8, 38, 0, N * 6)
    srd(a, 16, 36, f's{sT0}', f's{sT1}')
    srd(a, 20, 40, f's{sT0}', f's{sT1}')
    srd(a, 44, 40, f's{sT2}', f's{sT3}')
    a('K2_ROUND:')
    EN = SF
    a(f'''
    v_lshrrev_b32 v1, 4, v{vT}
    v_lshlrev_b32 v2, 10, v1
    s_lshl_b32 s3, s{sB}, 2
    s_add_u32 s3, s3, {WS_OFF - WS_REC}
    ''')
    for i in range(4):
        a(f'buffer_load_dword v{EN + i}, v2, s[12:15], s3 offen')
        if i < 3:
            a(f's_add_u32 s3, s3, 32768')
    a(f'''
    s_cmp_eq_u32 s{sRound}, 0
    s_cbranch_scc0 K2_NOBULK
    ''')
    W1F = 128
    a(f'''
    v_lshrrev_b32 v3, 4, v{vLane}
    v_and_b32 v4, 15, v{vLane}
    s_and_b32 s3, s{sW}, 3
    s_lshl_b32 s{sT1}, s3, 2
    v_add_u32 v5, s{sT1}, v3
    v_xor_b32 v5, v5, v4
    v_lshlrev_b32 v5, 4, v5
    v_lshl_add_u32 v5, v3, 8, v5
    v_lshlrev_b32 v6, 4, v{vLane}
    s_lshl_b32 s{sT0}, s{sW}, 10
    s_add_u32 m0, s{sT0}, {HT2}
    s_lshl_b32 s3, s3, 13
    s_add_u32 s3, s3, {WS_W - WS_REC}
    buffer_load_dwordx4 v5, s[16:19], s{sT0} offen lds
    ''')
    for i in (1, 2):
        a(f'''
        s_add_u32 m0, s{sT0}, {HT2 + 8192 * i}
        s_add_u32 s{sT1}, s{sT0}, {8192 * i}
        buffer_load_dwordx4 v5, s[16:19], s{sT1} offen lds
        ''')
    a(f'''
    v_xor_b32 v7, v3, v4
    v_lshlrev_b32 v7, 4, v7
    v_lshl_add_u32 v7, v3, 8, v7
    s_mov_b32 m0, {HT2 + 24576}
    s_movk_i32 s{sT1}, 24576
    buffer_load_dwordx4 v7, s[16:19], s{sT1} offen lds
    ''')
    for s in range(8):
        if s == 4:
            a('s_add_u32 s3, s3, 4096')
        a(f'buffer_load_dwordx4 {vr(W1F + 4 * s, 4)}, v6, s[12:15], s3 offen offset:{1024 * (s & 3)}')
    a(f'''
    s_lshl_b32 s{sT0}, s{sW}, 12
    s_add_u32 m0, s{sT0}, {WH1L}
    s_add_u32 s{sT0}, s{sT0}, {WS_W - WS_REC + 32768}
    ''')
    for i in range(4):
        a(f'buffer_load_dwordx4 v6, s[12:15], s{sT0} offen offset:{1024 * i} lds')
    a(f's_mov_b32 s3, {WS_W - WS_REC + 3 * 32768}')
    for i in range(4):
        a(f'buffer_load_dwordx4 {vr(I0 + 4 * i, 4)}, v6, s[12:15], s3 offen offset:{1024 * i}')
    a(f'''
    v_add_u32 v7, s{sN0}, v{vT}
    v_mul_u32_u24 v7, 6, v7
    v_and_b32 v7, -4, v7
    buffer_load_dwordx2 v[{vX1}:{vX2}], v7, s[8:11], 0 offen
    ''')
    NBULK = 4 + 8 + 4 + 4 + 1
    a(f'''
    K2_NOBULK:
    v_and_b32 v8, 31, v{vLane}                  ; j
    v_lshrrev_b32 v9, 5, v{vLane}               ; h
    v_and_b32 v10, 3, v{vLane}                  ; c
    v_lshlrev_b32 v{IDX + 1}, 4, v10
    v_lshl_add_u32 v{IDX + 1}, v9, 6, v{IDX + 1}
    v_lshlrev_b32 v{AB}, 4, v8
    v_mov_b32 v{AB + 1}, v{AB}
    v_bfe_u32 v11, v{vLane}, 2, 1
    v_bfe_u32 v12, v{vLane}, 3, 2
    v_lshl_add_u32 v{vX0}, v11, 2, v12          ; lambda(e)
    s_lshl_b32 s3, s{sW}, 9
    s_add_u32 s3, s3, {STG}
    v_lshl_add_u32 v{vLpair}, v{vX0}, 2, s3
    v_lshl_add_u32 v{vStg}, v{vLane}, 2, s3
    s_add_u32 s3, s3, 256
    v_lshl_add_u32 v{vLaoff}, v9, 4, s3
    s_lshl_b32 s3, s{sW}, 12
    s_add_u32 s3, s3, {SBUF}
    v_lshl_add_u32 v{vSw}, v{vLane}, 6, s3
    v_bfe_u32 v11, v{vLane}, 2, 2               ; r
    v_lshl_add_u32 v11, v9, 2, v11
    v_lshl_add_u32 v{vSr}, v11, 6, s3
    v_bfe_u32 v11, v{vLane}, 4, 1
    v_lshl_add_u32 v{vSr}, v11, 5, v{vSr}
    v_lshl_add_u32 v{vSr}, v10, 3, v{vSr}
    v_mul_u32_u24 v{vFl}, {RS}, v9
    v_lshl_add_u32 v{vFl}, v8, 2, v{vFl}
    v_add_u32 v{vFl}, {MACC}, v{vFl}
    v_bfe_u32 v12, v{vLane}, 3, 1               ; p
    v_lshl_add_u32 v12, v12, 1, v11
    v_lshl_add_u32 v12, v12, 1, v9
    v_bfe_u32 v11, v{vLane}, 2, 1
    v_lshlrev_b32 v11, 2, v11
    v_lshl_add_u32 v{vFp}, v12, 4, v11
    v_add_u32 v{vFp}, {PACC}, v{vFp}
    v_lshlrev_b32 v11, 1, v9
    v_cmp_eq_u32 s[{sM0}:{sM0 + 1}], v10, v11
    v_add_u32 v11, 1, v11
    v_cmp_eq_u32 s[{sM1}:{sM1 + 1}], v10, v11
    ''')
    a(f'''
    v_mov_b32 v12, 0
    v_mov_b32 v13, 0
    v_mov_b32 v14, 0
    v_mov_b32 v15, 0
    v_bfrev_b32 v16, 1
    v_mov_b32 v17, 0
    v_bfrev_b32 v18, 1
    v_mov_b32 v19, 0
    v_lshlrev_b32 v3, 4, v{vT}
    v_add_u32 v4, {LIST}, v3
    v_add_u32 v3, {SBUF}, v3
    ds_write_b128 v4, v[16:19]
    ds_write_b128 v4, v[16:19] offset:8192
    ds_write_b128 v3, v[12:15]
    ds_write_b128 v3, v[12:15] offset:8192
    ds_write_b128 v3, v[12:15] offset:16384
    ds_write_b128 v3, v[12:15] offset:24576
    v_lshlrev_b32 v3, 4, v{vLane}
    v_add_u32 v3, {LIST + 16384}, v3
    ds_write_b128 v3, v[16:19]
    v_and_b32 v3, 31, v{vLane}
    v_lshlrev_b32 v3, 2, v3
    v_add_u32 v3, {CNT}, v3
    ds_write_b32 v3, v12
    v_and_b32 v3, 15, v{vT}
    v_lshl_add_u32 v3, v3, 1, s{sO}             ; o + 2*(t&15)
    v_mul_u32_u24 v4, {CHB}, v1
    v_lshl_add_u32 v4, v3, 3, v4
    v_bfrev_b32 v5, 1
    s_cmp_eq_u32 s{sRound}, 0
    s_cbranch_scc1 K2_W0
    s_waitcnt vmcnt(0)
    K2_W0:
    s_waitcnt vmcnt({NBULK})
    ''')
    stamp(a, 1)
    for i in range(4):
        a(f'''
        v_lshrrev_b32 v{8 + i}, 16, v{EN + i}
        v_and_b32 v{EN + i}, 0xffff, v{EN + i}
        v_sub_u32 v{12 + i}, v{8 + i}, v3
        v_lshl_add_u32 v{EN + i}, v{EN + i}, 3, v4
        v_cmp_lt_i32 s[{sMask + 4 * i}:{sMask + 4 * i + 1}], 0, v{12 + i}
        v_cmp_lt_i32 s[{sMask + 4 * i + 2}:{sMask + 4 * i + 3}], 1, v{12 + i}
        ''')
    a(f'''
    s_cmp_eq_u32 s{sMode}, 0
    s_cbranch_scc1 K2_ALLQ
    ''')
    for i in range(4):
        a(f'''
        s_cmp_eq_u32 s{sQ}, {i}
        s_cselect_b64 s[{sMask + 4 * i}:{sMask + 4 * i + 1}], s[{sMask + 4 * i}:{sMask + 4 * i + 1}], 0
        s_cselect_b64 s[{sMask + 4 * i + 2}:{sMask + 4 * i + 3}], s[{sMask + 4 * i + 2}:{sMask + 4 * i + 3}], 0
        ''')
    a('K2_ALLQ:')
    a('s_mov_b32 s3, 0')
    for i in range(4):
        a(f'''
        v_cndmask_b32_e64 v{EN + i}, v5, v{EN + i}, s[{sMask + 4 * i}:{sMask + 4 * i + 1}]
        buffer_load_dwordx4 {vr(RCD + 4 * i, 4)}, v{EN + i}, s[12:15], s3 offen
        ''')
        if i < 3:
            a(f's_add_u32 s3, s3, {32 * CHB}')
    a(f'''
    v_max3_u32 v8, v8, v9, v10
    v_max_u32 v{vX3}, v8, v11
    s_waitcnt vmcnt(4) lgkmcnt(0)
    s_barrier
    ''')
    stamp(a, 2)
    a(f'''
    s_cmp_eq_u32 s{sRound}, 0
    s_cbranch_scc0 K2_NOGEMM
    ''')
    H0, H1, AO, WB = 0, 32, 96, 160
    T = SF
    a(f'''
    v_add_u32 v{T}, s{sN0}, v{vT}
    v_lshlrev_b32 v{T}, 4, v{T}
    v_alignbit_b32 v{T + 1}, v{vX2}, v{vX1}, v{T}
    v_lshrrev_b32 v{T + 6}, v{T}, v{vX2}
    v_lshlrev_b32 v{T + 4}, 16, v{T + 1}
    v_and_b32 v{T + 5}, 0xffff0000, v{T + 1}
    v_lshlrev_b32 v{T + 6}, 16, v{T + 6}
    v_mov_b32 v{T + 7}, 0
    v_lshlrev_b32 v{T}, 4, v{vT}
    v_add_u32 v{T}, {PD}, v{T}
    v_cmp_gt_u32 vcc, {NB}, v{vT}
    s_and_saveexec_b64 s[{sT0}:{sT0 + 1}], vcc
    ds_write_b128 v{T}, {vr(T + 4, 4)}
    s_mov_b64 exec, s[{sT0}:{sT0 + 1}]
    v_and_b32 v{T}, 31, v{vLane}                ; i
    v_lshrrev_b32 v{T + 1}, 5, v{vLane}         ; h
    v_and_b32 v{T + 2}, 15, v{vLane}
    v_xor_b32 v{T + 2}, v{T + 2}, v{T + 1}
    v_lshlrev_b32 v{T + 2}, 4, v{T + 2}
    v_lshl_add_u32 v{T + 2}, v{T}, 8, v{T + 2}
    s_lshr_b32 s3, s{sW}, 1                     ; nt
    s_lshl_b32 s{sT0}, s3, 13
    v_add_u32 v{T + 2}, s{sT0}, v{T + 2}
    s_and_b32 s{sT0}, s{sW}, 1
    s_lshl_b32 s{sT0}, s{sT0}, 14
    s_add_u32 s{sT0}, s{sT0}, {WH1L}
    v_lshl_add_u32 v{T + 3}, v{vLane}, 4, s{sT0}
    ''')
    for s in range(8):
        if s:
            a(f'v_xor_b32 v{T + 4}, {32 * s}, v{T + 2}')
        a(f'ds_read_b128 {vr(H0 + 4 * s, 4)}, v{T + 4 if s else T + 2} offset:{HT2}')
        a(f'v_xor_b32 v{T + 5}, {8192 + 32 * s}, v{T + 2}')
        a(f'ds_read_b128 {vr(H1 + 4 * s, 4)}, v{T + 5} offset:{HT2}')
        if s >= 4:
            k = s - 4
            a(f's_waitcnt lgkmcnt(8)')
            a(mfma(AO, W1F + 4 * k, H0 + 4 * k, '0' if k == 0 else None))
            a(mfma(AO + 16, W1F + 4 * k, H1 + 4 * k, '0' if k == 0 else None))
    for k in range(4, 8):
        a(f'ds_read_b128 {vr(WB + 8 * (k - 4), 4)}, v{T + 3} offset:{2048 * (k - 4)}')
        a(f'ds_read_b128 {vr(WB + 8 * (k - 4) + 4, 4)}, v{T + 3} offset:{2048 * (k - 4) + 1024}')
        a(f's_waitcnt lgkmcnt(8)')
        a(mfma(AO, W1F + 4 * k, H0 + 4 * k))
        a(mfma(AO + 16, W1F + 4 * k, H1 + 4 * k))
    for s in range(8):
        a(f'ds_read_b128 {vr(W1F + 4 * s, 4)}, v{T + 3} offset:{8192 + 1024 * s}')
        a(f's_waitcnt lgkmcnt(8)')
        a(mfma(CC, H0 + 4 * s, WB + 4 * s, '0' if s == 0 else None))
    a(f'''
    s_mov_b32 s{sC0}, {NLOG2E:#x}
    s_mov_b32 s{sC0 + 1}, {NLOG2E:#x}
    s_lshl_b32 s{sT0}, s3, 5
    v_add_u32 v{T + 4}, s{sT0}, v{T}
    v_xor_b32 v{T + 5}, 32, v{T + 4}
    v_mul_u32_u24 v{T + 6}, {RS}, v{T + 4}
    v_mul_u32_u24 v{T + 7}, {RS}, v{T + 5}
    s_and_b32 s3, s{sW}, 3
    s_lshl_b32 s3, s3, 7
    v_lshl_add_u32 v{T + 1}, v{T + 1}, 4, s3
    v_add_u32 v{T + 6}, v{T + 6}, v{T + 1}
    v_add_u32 v{T + 7}, v{T + 7}, v{T + 1}
    s_movk_i32 s3, {NB}
    v_cmp_gt_u32 s[{sT0}:{sT0 + 1}], s3, v{T + 4}
    v_cmp_gt_u32 s[{sT2}:{sT2 + 1}], s3, v{T + 5}
    ''')
    for s in range(8):
        a(f's_waitcnt lgkmcnt({7 - s})')
        a(mfma(CC + 16, H0 + 4 * s, W1F + 4 * s, '0' if s == 0 else None))
    for r in range(0, 32, 2):
        a(f'v_pk_mul_f32 {vr(AO + r, 2)}, {vr(AO + r, 2)}, s[{sC0}:{sC0 + 1}]')
    a(f's_mov_b64 exec, s[{sT0}:{sT0 + 1}]')
    for jj in range(4):
        a(f'ds_write_b128 v{T + 6}, {vr(AO + 4 * jj, 4)} offset:{ATAB + 32 * jj}')
    a(f's_mov_b64 exec, s[{sT2}:{sT2 + 1}]')
    for jj in range(4):
        a(f'ds_write_b128 v{T + 7}, {vr(AO + 16 + 4 * jj, 4)} offset:{ATAB + 32 * jj}')
    a('s_mov_b64 exec, -1')
    for r in range(0, 32, 2):
        a(f'v_pk_mul_f32 {vr(CC + r, 2)}, {vr(CC + r, 2)}, s[{sC0}:{sC0 + 1}]')
    a('K2_NOGEMM:')
    stamp(a, 3)
    G4, RK = 0, 8
    a(f'''
    v_mov_b32 v16, 1
    v_mov_b32 v17, {CNT}
    s_add_u32 s3, s{sO}, 32
    v_cmp_lt_u32 vcc, s3, v{vX3}
    s_and_saveexec_b64 s[{sT0}:{sT0 + 1}], vcc
    ds_write_b32 v17, v16 offset:64
    s_mov_b64 exec, -1
    s_waitcnt vmcnt(0)
    ''')
    for x in range(8):
        a(f'v_lshrrev_b32 v{G4 + x}, 17, v{RCD + 2 * x}')
        a(f'v_and_b32 v{G4 + x}, 0x3c, v{G4 + x}')
        a(f'v_add_u32 v{24 + x}, {CNT}, v{G4 + x}')
    for x in range(8):
        a(f's_mov_b64 exec, s[{sMask + 2 * x}:{sMask + 2 * x + 1}]')
        a(f'ds_add_rtn_u32 v{RK + x}, v{24 + x}, v16')
    a(f'''
    s_mov_b64 exec, -1
    v_and_b32 v18, 15, v{vLane}
    v_lshl_add_u32 v18, v18, 2, v17
    s_waitcnt lgkmcnt(0)
    s_barrier
    ds_read_b32 v19, v18
    ds_read_b32 v20, v17 offset:64
    s_waitcnt lgkmcnt(0)
    v_add_u32 v19, 15, v19
    v_lshrrev_b32 v19, 4, v19
    v_readfirstlane_b32 s{sMore}, v20
    v_mov_b32 v{vGend}, v19
    v_mov_b32 v21, v19
    s_nop 0
    v_add_u32_dpp v{vGend}, v{vGend}, v{vGend} row_shr:1 row_mask:0xf bank_mask:0xf
    s_nop 1
    v_add_u32_dpp v{vGend}, v{vGend}, v{vGend} row_shr:2 row_mask:0xf bank_mask:0xf
    s_nop 1
    v_add_u32_dpp v{vGend}, v{vGend}, v{vGend} row_shr:4 row_mask:0xf bank_mask:0xf
    s_nop 1
    v_add_u32_dpp v{vGend}, v{vGend}, v{vGend} row_shr:8 row_mask:0xf bank_mask:0xf
    v_sub_u32 v19, v{vGend}, v19
    v_readlane_b32 s{sT}, v{vGend}, 15
    v_lshlrev_b32 v19, 7, v19
    v_add_u32 v19, {LIST}, v19
    s_cmp_gt_u32 s{sT}, {CAP // 16}
    s_cbranch_scc1 K2_OVER
    s_lshr_b32 s{sT0}, s{sT}, 3
    v_cmp_lt_u32 vcc, s{sT0}, v21
    s_and_b32 s{sSer}, vcc_lo, 0x1fff
    s_mov_b32 s{sFm}, s{sRound}
    s_mov_b32 s{sTail}, 0
    v_cmp_eq_u32 vcc, 0, v21
    s_and_b32 s3, vcc_lo, 0x1fff
    s_cbranch_scc0 K2_NOZERO
    s_cmp_eq_u32 s{sRound}, 0
    s_cbranch_scc0 K2_NOZERO
    s_call_b64 s[{sRet}:{sRet + 1}], K2_ZERO
    K2_NOZERO:
    ''')
    for x in range(8):
        a(f'ds_bpermute_b32 v{24 + x}, v{G4 + x}, v19')
    a(f'''
    s_lshr_b32 s{sT0}, s{sT}, 3
    s_and_b32 s{sT1}, s{sT}, 7
    s_mul_i32 s{sBeta}, s{sT0}, s{sW}
    s_min_u32 s{sT2}, s{sW}, s{sT1}
    s_add_u32 s{sBeta}, s{sBeta}, s{sT2}
    s_cmp_lt_u32 s{sW}, s{sT1}
    s_addc_u32 s{sEnd}, s{sBeta}, s{sT0}
    s_lshl_b32 s3, s{sBeta}, 7
    s_add_u32 s3, s3, {LIST}
    v_lshl_add_u32 v{vLidx}, v{vX0}, 3, s3
    v_lshl_add_u32 v{vLrec}, v{vLane}, 3, s3
    v_cmp_ge_u32 vcc, s{sBeta}, v{vGend}
    s_and_b32 vcc_lo, vcc_lo, 0x1fff
    s_bcnt1_i32_b32 s{sG}, vcc_lo
    s_waitcnt lgkmcnt(0)
    ''')
    for x in range(8):
        a(f'v_lshl_add_u32 v{24 + x}, v{RK + x}, 3, v{24 + x}')
    a(f'v_readlane_b32 s{sGend}, v{vGend}, s{sG}')
    for x in range(8):
        a(f's_mov_b64 exec, s[{sMask + 2 * x}:{sMask + 2 * x + 1}]')
        a(f'ds_write_b64 v{24 + x}, {vr(RCD + 2 * x, 2)}')
    a(f'''
    s_mov_b64 exec, -1
    s_waitcnt lgkmcnt(0)
    s_barrier
    ''')
    stamp(a, 4)
    a(f'''
    ds_read_b64 {vr(REC, 2)}, v{vLrec}
    ds_read_u16 v0, v{vLidx}
    ds_read_u16 v2, v{vLidx} offset:64
    ds_read_u16 v4, v{vLidx} offset:128
    ds_read_u16 v6, v{vLidx} offset:192
    ds_read_u16 v{IDX}, v{vLidx} offset:256
    v_mov_b32 v1, v{IDX + 1}
    v_mov_b32 v3, v{IDX + 1}
    v_mov_b32 v5, v{IDX + 1}
    v_mov_b32 v7, v{IDX + 1}
    s_add_u32 s3, s{sBeta}, 1
    s_cmp_lt_u32 s{sBeta}, s{sEnd}
    s_cselect_b32 s6, {N}, 0
    s_waitcnt lgkmcnt(5)
    ''')
    stage1(a)
    a('s_waitcnt lgkmcnt(1)')
    for t in range(4):
        if t == 2:
            a(f's_cmp_lt_u32 s3, s{sEnd}')
            a(f's_cselect_b32 s6, {N}, 0')
        a(f'buffer_load_dwordx4 {vr(GG + 8 * t, 4)}, v[{2 * t}:{2 * t + 1}], s[4:7], 0 idxen offen')
        a(f'buffer_load_dwordx4 {vr(GG + 8 * t + 4, 4)}, v[{2 * t}:{2 * t + 1}], s[4:7], 0 idxen offen offset:128')
    a(f'''
    v_mov_b64 {vr(ZZ, 2)}, 0
    v_mov_b64 v[8:9], 0
    v_mov_b64 v[10:11], 0
    s_nop 1
    ''')
    a(mfma(16, 8, 8, '0'))
    a(mfma(32, 8, 8, '0'))
    a(mfma(48, 8, 8, '0'))
    a(mfma(MM, 8, 8, '0'))
    a(f'''
    v_mov_b64 {vr(SF, 2)}, 0
    v_mov_b64 {vr(SF + 2, 2)}, 0
    v_mov_b64 {vr(PP, 2)}, 0
    v_mov_b64 {vr(PP + 2, 2)}, 0
    v_mov_b32 v{SAo}, v{vSw}
    s_waitcnt lgkmcnt(0)
    ''')
    a(mfma(0, SF, SF, '0'))
    a(f'''
    s_cmp_lt_u32 s{sBeta}, s{sEnd}
    s_cbranch_scc0 K2_WAVE_DONE
    s_waitcnt vmcnt(8)
    ''')
    stamp(a, 5)
    stage2(a)
    stage_w_aoff(a)
    stage_w_pair(a)
    stage_w_s(a)
    a(f'''
    ds_read_b128 {vr(AD, 4)}, v{vLaoff}
    s_mov_b64 exec, s[{sM0}:{sM0 + 1}]
    ds_read2_b32 {vr(PP, 2)}, v{vLpair} offset0:0 offset1:0
    s_mov_b64 exec, s[{sM1}:{sM1 + 1}]
    ds_read2_b32 {vr(PP + 2, 2)}, v{vLpair} offset0:0 offset1:0
    s_mov_b64 exec, -1
    s_waitcnt lgkmcnt(2)
    v_lshl_add_u64 {vr(AD, 2)}, {vr(AD, 2)}, 0, {vr(AB, 2)}
    v_lshl_add_u64 {vr(AD + 2, 2)}, {vr(AD + 2, 2)}, 0, {vr(AB, 2)}
    ''')
    for jj in range(4):
        a(f'ds_read_b128 {vr(D0 + 4 * jj, 4)}, v{AD + jj}')
    a(f'''
    ds_read_b128 {vr(AD, 4)}, v{vLaoff} offset:32
    s_waitcnt vmcnt(6) lgkmcnt(0)
    ''')
    a(mfma(D0, PP, QQ))
    a(mfma(D0, GG, I0))
    a(mfma(D0, GG + 4, I1))
    a(f'''
    v_lshl_add_u64 {vr(AD, 2)}, {vr(AD, 2)}, 0, {vr(AB, 2)}
    v_lshl_add_u64 {vr(AD + 2, 2)}, {vr(AD + 2, 2)}, 0, {vr(AB, 2)}
    s_nop 7
    ''')
    stamp(a, 6)
    a('.p2align 6')
    a('K2_LOOP:')
    for tau in range(8):
        slot(a, tau)
    a('s_branch K2_LOOP')
    a('K2_DRAIN:')
    a('s_nop 0')
    for c in range(4):
        a(mfma(ACC + 16 * c, SF, MM + 4 * c))
    a(f'''
    s_cmp_eq_u32 s{sBeta}, s{sGend}
    s_cselect_b32 s{sFm}, s{sFm}, 2
    s_cselect_b32 s{sTail}, 0, 1
    s_nop 8
    s_call_b64 s[{sRet}:{sRet + 1}], K2_FLUSH
    K2_WAVE_DONE:
    ''')
    stamp(a, 7)
    a(f'''
    s_cmp_lg_u32 s{sMode}, 0
    s_cselect_b32 s3, 3, 0
    s_cmp_lt_u32 s{sQ}, s3
    s_cselect_b32 s{sT3}, 1, 0
    s_or_b32 s3, s{sT3}, s{sMore}
    s_cbranch_scc1 K2_NOPRE
    ''')
    epi_prefetch(a)
    a(f'''
    K2_NOPRE:
    s_waitcnt lgkmcnt(0)
    s_barrier
    s_mov_b32 s{sGend}, 0
    K2_TAILS:
    s_cmp_eq_u32 s{sSer}, 0
    s_cselect_b32 s3, s{sW}, s{sGend}
    s_cmp_eq_u32 s3, s{sW}
    s_cselect_b32 s3, s{sTail}, 0
    s_cmp_eq_u32 s3, 0
    s_cbranch_scc1 K2_NOTAIL
    s_call_b64 s[{sRet}:{sRet + 1}], K2_FLUSH2
    K2_NOTAIL:
    s_cmp_eq_u32 s{sSer}, 0
    s_cbranch_scc1 K2_TAILD
    s_add_u32 s{sGend}, s{sGend}, 1
    s_cmp_lt_u32 s{sGend}, 8
    s_cbranch_scc0 K2_TAILD
    s_barrier
    s_branch K2_TAILS
    K2_TAILD:
    s_or_b32 s3, s{sT3}, s{sMore}
    s_cbranch_scc0 K2_EPI
    s_add_u32 s{sQ}, s{sQ}, 1
    s_cmp_lg_u32 s{sT3}, 0
    s_cbranch_scc1 K2_NEXT
    s_mov_b32 s{sMode}, 0
    s_mov_b32 s{sQ}, 0
    s_add_u32 s{sO}, s{sO}, 32
    K2_NEXT:
    s_mov_b32 s{sRound}, 1
    s_waitcnt vmcnt(0) lgkmcnt(0)
    s_barrier
    s_branch K2_ROUND
    K2_OVER:
    s_mov_b32 s{sMode}, 1
    s_mov_b32 s{sQ}, 0
    s_cmp_eq_u32 s{sRound}, 0
    s_cbranch_scc0 K2_NEXT
    s_call_b64 s[{sRet}:{sRet + 1}], K2_ZERO
    s_branch K2_NEXT
    K2_ZERO:
    ''')
    zero_acc(a)
    a(f's_setpc_b64 s[{sRet}:{sRet + 1}]')
    flush(a)
    HR, MB, WF, HL, HH = 192, 96, 128, 128, 144
    a('K2_EPI:')
    a('s_nop 1')
    a('s_waitcnt vmcnt(16)')
    a('s_barrier')
    stamp(a, 8)
    for s in range(8):
        a(f'ds_read_b128 {vr(8 * s, 4)}, v{vX1} offset:{MACC + 64 * s}')
        a(f'ds_read_b128 {vr(8 * s + 4, 4)}, v{vX1} offset:{MACC + 64 * s + 16}')
        a(f'ds_read_b128 {vr(WF + 8 * s, 4)}, v{vX0} offset:{1024 * s}')
        a(f'ds_read_b128 {vr(WF + 8 * s + 4, 4)}, v{vX0} offset:{8192 + 1024 * s}')
        if s >= 2:
            epi_step(a, s - 2, 8, MB, WF)
    epi_step(a, 6, 4, MB, WF)
    epi_step(a, 7, 0, MB, WF)
    a(f'''
    s_cmp_lt_u32 s{sW}, 2
    s_cbranch_scc0 K2_NOPOS
    v_lshlrev_b32 v0, 4, v{vT}
    v_add_u32 v1, {PD}, v0
    v_add_u32 v0, {PACC}, v0
    ds_read_b128 v[4:7], v1
    ds_read_b128 v[8:11], v0
    v_mul_u32_u24 v2, 6, v{vT}
    s_waitcnt lgkmcnt(0)
    v_add_f32 v4, v4, v8
    v_add_f32 v5, v5, v9
    v_add_f32 v6, v6, v10
    v_cvt_pk_bf16_f32 v4, v4, v5
    v_cvt_pk_bf16_f32 v6, v6, v6
    v_cmp_gt_u32 vcc, s{sNv}, v{vT}
    s_and_saveexec_b64 s[{sT2}:{sT2 + 1}], vcc
    s_cbranch_execz K2_NOPOS1
    buffer_store_short v4, v2, s[44:47], 0 offen {so}
    buffer_store_short_d16_hi v4, v2, s[44:47], 0 offen offset:2 {so}
    buffer_store_short v6, v2, s[44:47], 0 offen offset:4 {so}
    s_mov_b64 exec, -1
    s_waitcnt vmcnt(3)
    s_branch K2_HROK
    K2_NOPOS1:
    s_mov_b64 exec, -1
    K2_NOPOS:
    s_waitcnt vmcnt(0)
    K2_HROK:
    ''')
    for r in range(16):
        a(f'v_lshlrev_b32 v{HL + r}, 16, v{HR + r}')
        a(f'v_and_b32 v{HH + r}, 0xffff0000, v{HR + r}')
    for u in range(2):
        for r in range(16):
            a(f'v_exp_f32 v{16 * u + r}, v{CC + 16 * u + r}')
        for r in range(0, 16, 2):
            a(f'v_pk_add_f32 {vr(16 * u + r, 2)}, {vr(16 * u + r, 2)}, 1.0 op_sel_hi:[1,0]')
        for r in range(16):
            a(f'v_rcp_f32 v{16 * u + r}, v{16 * u + r}')
        for r in range(0, 16, 2):
            a(f'v_pk_mul_f32 {vr(16 * u + r, 2)}, {vr(16 * u + r, 2)}, {vr(CC + 16 * u + r, 2)}')
        for r in range(0, 16, 2):
            a(f'v_pk_fma_f32 {vr(16 * u + r, 2)}, {vr(16 * u + r, 2)}, s[{sC0}:{sC0 + 1}], {vr((HL, HH)[u] + r, 2)}')
    for r in range(16):
        jj, ii = r >> 2, r & 3
        a(f'v_cvt_pk_bf16_f32 v{32 + r}, v{r}, v{16 + r}')
        a(f'buffer_store_dword v{32 + r}, v{vX3}, s[20:23], s{sT0 if jj < 2 else sT1} offen offset:{(jj & 1) * 2048 + ii * 256} {so}')
    if OPT['stamps']:
        stamp(a, 9)
        a('s_waitcnt vmcnt(0)')
        stamp(a, 10)
        a(f'''
        s_lshl_b32 s3, s2, 3
        s_add_u32 s3, s3, s{sW}
        s_lshl_b32 s3, s3, 8
        s_add_u32 s3, s3, {0x1000000}
        ''')
        srd(a, 12, 42, 's3', 256)
        a(f'''
        v_lshlrev_b32 v0, 2, v{vLane}
        buffer_store_dword v{vX4}, v0, s[12:15], 0 offen
        ''')
        if OPT.get('dbg'):
            a(f'''
            s_load_dwordx2 s[36:37], s[0:1], 72
            s_memrealtime s[38:39]
            s_waitcnt lgkmcnt(0)
            s_sub_u32 s38, s38, s{sStamp + 4}
            v_readlane_b32 s3, v{vX4}, 0
            s_nop 3
            v_subrev_u32 v{vX4}, s3, v{vX4}
            v_writelane_b32 v{vX4}, s38, 0
            s_or_b32 s3, s2, s{sW}
            s_cmp_eq_u32 s3, 0
            s_cselect_b32 s3, 64, 0
            ''')
            srd(a, 12, 36, 0, 's3')
            a(f'buffer_store_dword v{vX4}, v0, s[12:15], 0 offen')
    a('s_endpgm')


def epi_prefetch(a):
    HR = 192
    a(f'''
    v_lshlrev_b32 v{vX0}, 4, v{vLane}
    s_lshl_b32 s{sT0}, s{sW}, 12
    s_add_u32 m0, s{sT0}, {SBUF}
    s_add_u32 s{sT0}, s{sT0}, {WS_W - WS_REC + 65536}
    v_and_b32 v{vX1}, 31, v{vLane}
    v_lshrrev_b32 v{vX2}, 5, v{vLane}
    s_waitcnt lgkmcnt(0)
    ''')
    for i in range(4):
        a(f'buffer_load_dwordx4 v{vX0}, s[12:15], s{sT0} offen offset:{1024 * i} lds')
    a(f'''
    v_lshlrev_b32 v{vX3}, 10, v{vX2}
    v_lshl_add_u32 v{vX3}, v{vX1}, 2, v{vX3}
    s_lshr_b32 s3, s{sW}, 1
    s_lshl_b32 s{sT0}, s3, 13
    s_and_b32 s{sT2}, s{sW}, 1
    s_lshl_b32 s{sT1}, s{sT2}, 7
    s_add_u32 s{sT0}, s{sT0}, s{sT1}
    s_add_u32 s{sT1}, s{sT0}, 4096
    ''')
    for r in range(16):
        jj, ii = r >> 2, r & 3
        a(f'buffer_load_dword v{HR + r}, v{vX3}, s[16:19], s{sT0 if jj < 2 else sT1} offen offset:{(jj & 1) * 2048 + ii * 256}')
    a(f'''
    s_lshl_b32 s3, s3, 5
    v_add_u32 v{vX1}, s3, v{vX1}
    v_mul_u32_u24 v{vX1}, {RS}, v{vX1}
    v_lshl_add_u32 v{vX1}, v{vX2}, 5, v{vX1}
    s_lshl_b32 s{sT2}, s{sT2}, 14
    s_add_u32 s{sT2}, s{sT2}, {SBUF}
    v_add_u32 v{vX0}, s{sT2}, v{vX0}
    s_mov_b32 s{sC0}, {NLN2:#x}
    s_mov_b32 s{sC0 + 1}, {NLN2:#x}
    ''')


def epi_step(a, s, wait, MB, WF):
    a(f's_waitcnt lgkmcnt({wait})')
    for x in range(4):
        a(f'v_cvt_pk_bf16_f32 v{MB + 4 * s + x}, v{8 * s + 2 * x}, v{8 * s + 2 * x + 1}')
    a('s_nop 1')
    a(mfma(CC, MB + 4 * s, WF + 8 * s))
    a(mfma(CC + 16, MB + 4 * s, WF + 8 * s + 4))


def stage1(a):
    t = EE
    a(f'''
    v_and_b32 v{t}, 0xffff, v{REC}
    v_bfe_u32 v{t + 1}, v{REC}, 16, 7
    v_mul_u32_u24 v{t}, 6, v{t}
    v_lshlrev_b32 v{t + 1}, 4, v{t + 1}
    v_and_b32 v{t}, -4, v{t}
    v_add_u32 v{t + 1}, {PD}, v{t + 1}
    buffer_load_dwordx2 {vr(POSQ, 2)}, v{t}, s[8:11], 0 offen
    ds_read_b128 {vr(PD4, 4)}, v{t + 1}
    ''')


def stage2(a):
    t = EE
    a(f'''
    v_lshlrev_b32 v{t}, 4, v{REC}
    v_cmp_lt_i32 s[{sVal}:{sVal + 1}], -1, v{REC}
    v_alignbit_b32 v{t + 1}, v{POSQ + 1}, v{POSQ}, v{t}
    v_lshrrev_b32 v{t + 2}, v{t}, v{POSQ + 1}
    v_lshlrev_b32 v{t + 3}, 16, v{t + 1}
    v_and_b32 v{t + 4}, 0xffff0000, v{t + 1}
    v_lshlrev_b32 v{t + 5}, 16, v{t + 2}
    v_sub_f32 v{t + 3}, v{PD4}, v{t + 3}
    v_sub_f32 v{t + 4}, v{PD4 + 1}, v{t + 4}
    v_sub_f32 v{t + 5}, v{PD4 + 2}, v{t + 5}
    v_cvt_pk_bf16_f32 v{SN}, 1.0, v{t + 3}
    v_cvt_pk_bf16_f32 v{SN + 1}, v{t + 4}, v{t + 5}
    v_bfe_u32 v{t + 6}, v{REC}, 16, 7
    v_bfe_u32 v{t + 7}, v{REC}, 16, 3
    v_and_b32 v{t + 3}, 0xffff0000, v{SN}
    v_lshlrev_b32 v{t + 4}, 16, v{SN + 1}
    v_and_b32 v{t + 5}, 0xffff0000, v{SN + 1}
    v_mul_f32 v{t + 3}, v{t + 3}, v{t + 3}
    v_mul_f32 v{t + 4}, v{t + 4}, v{t + 4}
    v_mul_f32 v{t + 5}, v{t + 5}, v{t + 5}
    v_mul_u32_u24 v{PD4 + 3}, {RS}, v{t + 6}
    v_lshl_add_u32 v{SAn}, v{t + 7}, 3, v{vSw}
    v_cvt_pk_bf16_f32 v{t + 3}, v{t + 3}, v{t + 4}
    v_cvt_pk_bf16_f32 v{t + 5}, 0, v{t + 5}
    v_lshlrev_b32 v{t + 4}, 16, v{t + 3}
    v_and_b32 v{t + 3}, 0xffff0000, v{t + 3}
    v_add_f32 v{t + 3}, v{t + 4}, v{t + 3}
    v_add_f32 v{t + 3}, v{t + 3}, v{t + 5}
    v_cvt_pk_bf16_f32 v{PRn}, v{t + 3}, v{REC + 1}
    ''')


def stage_w_aoff(a):
    a(f'ds_write_b32 v{vStg}, v{PD4 + 3} offset:256')


def stage_w_pair(a):
    a(f'ds_write_b32 v{vStg}, v{PRn}')


def stage_w_s(a):
    a(f'''
    ds_write_b64 v{SAo}, {vr(ZZ, 2)}
    s_mov_b64 exec, s[{sVal}:{sVal + 1}]
    ds_write_b64 v{SAn}, {vr(SN, 2)}
    s_mov_b64 exec, -1
    ''')


def slot(a, tau):
    cur, nxt = (D0, D1) if tau % 2 == 0 else (D1, D0)
    even = tau % 2 == 0
    exps = [f'v_exp_f32 v{EE + r}, v{cur + r}' for r in range(16)]
    rcps = [f'v_rcp_f32 v{EE + r}, v{EE + r}' for r in range(16)]
    g = GG + 8 * (tau % 4)
    gn = GG + 8 * ((tau + 1) % 4)
    t1 = (tau + 1) % 8
    t2 = (tau + 2) % 8
    for jj in range(4):
        a(f'ds_read_b128 {vr(nxt + 4 * jj, 4)}, v{AD + jj}')
    k = 0
    if even:
        for c in range(4):
            a(mfma(ACC + 16 * c, SF, MM + 4 * c))
            if c == 0:
                a(f's_add_u32 s3, s{sBeta}, 2')
                a(f's_cmp_lt_u32 s3, s{sEnd}')
                a(f's_cselect_b32 s6, {N}, 0')
            for x in range(3):
                a(exps[k]); k += 1
    else:
        for x in range(2):
            a(exps[k]); k += 1
    a(f'''
    ds_read_b128 {vr(AD, 4)}, v{vLaoff} offset:{32 * t2}
    s_mov_b64 exec, s[{sM0}:{sM0 + 1}]
    ds_read2_b32 {vr(PP, 2)}, v{vLpair} offset0:{8 * t1} offset1:{8 * t1}
    s_mov_b64 exec, s[{sM1}:{sM1 + 1}]
    ds_read2_b32 {vr(PP + 2, 2)}, v{vLpair} offset0:{8 * t1} offset1:{8 * t1}
    s_mov_b64 exec, -1
    ''')
    if tau == 6:
        stage_w_pair(a)
    a(exps[k]); k += 1
    if tau == 1:
        a(f'buffer_load_dwordx2 {vr(POSQ, 2)}, v{SAn}, s[8:11], 0 offen')
        a(f'ds_read_b128 {vr(PD4, 4)}, v{PRn}')
    a(f'buffer_load_dwordx4 {vr(g, 4)}, {vr(IDX, 2)}, s[4:7], 0 idxen offen')
    a(exps[k]); k += 1
    a(f'buffer_load_dwordx4 {vr(g + 4, 4)}, {vr(IDX, 2)}, s[4:7], 0 idxen offen offset:128')
    a(f'ds_read_u16 v{IDX}, v{vLidx} offset:{64 * (tau + 5)}')
    if tau == 0:
        a(f'ds_read_b64 {vr(REC, 2)}, v{vLrec} offset:512')
    if not even:
        b = tau // 2
        a(f'ds_read_b64_tr_b16 {vr(SF, 2)}, v{vSr} offset:{1024 * b}')
        a(f'ds_read_b64_tr_b16 {vr(SF + 2, 2)}, v{vSr} offset:{1024 * b + 512}')
        if tau == 7:
            stage_w_s(a)
    while k < 16:
        a(exps[k]); k += 1
    for r in range(0, 16, 2):
        a(f'v_pk_add_f32 {vr(EE + r, 2)}, {vr(EE + r, 2)}, 1.0 op_sel_hi:[1,0]')
    a(f's_waitcnt vmcnt({7 if tau in (1, 2, 3) else 6}) lgkmcnt(0)')
    ms = [mfma(nxt, PP, QQ), mfma(nxt, gn, I0), mfma(nxt, gn + 4, I1)]
    k = 0
    for m in ms:
        a(m)
        for x in range(3):
            a(rcps[k]); k += 1
    while k < 16:
        a(rcps[k]); k += 1
    a(f'''
    v_lshl_add_u64 {vr(AD, 2)}, {vr(AD, 2)}, 0, {vr(AB, 2)}
    v_lshl_add_u64 {vr(AD + 2, 2)}, {vr(AD + 2, 2)}, 0, {vr(AB, 2)}
    ''')
    for r in range(0, 16, 2):
        a(f'v_pk_mul_f32 {vr(EE + r, 2)}, {vr(EE + r, 2)}, {vr(cur + r, 2)}')
    o = 0 if even else 2
    for c in range(4):
        a(f'v_cvt_pk_bf16_f32 v{MM + 4 * c + o}, v{EE + c}, v{EE + 4 + c}')
        a(f'v_cvt_pk_bf16_f32 v{MM + 4 * c + o + 1}, v{EE + 8 + c}, v{EE + 12 + c}')
    if tau == 0:
        a(f'''
        v_mov_b32 v{SAo}, v{SAn}
        v_and_b32 v{SAn}, 0xffff, v{REC}
        v_bfe_u32 v{PRn}, v{REC}, 16, 7
        v_mul_u32_u24 v{SAn}, 6, v{SAn}
        v_lshlrev_b32 v{PRn}, 4, v{PRn}
        v_and_b32 v{SAn}, -4, v{SAn}
        v_add_u32 v{PRn}, {PD}, v{PRn}
        ''')
    if tau == 5:
        stage2(a)
        stage_w_aoff(a)
    if tau == 7:
        a(f'v_add_u32 v{vLidx}, 512, v{vLidx}')
        a(f'v_add_u32 v{vLrec}, 512, v{vLrec}')
    if even:
        a(f'''
        s_cmp_eq_u32 s{sBeta}, s{sGend}
        s_cbranch_scc0 K2_NF{tau}
        s_call_b64 s[{sRet}:{sRet + 1}], K2_FLUSH
        K2_NF{tau}:
        ''')
    else:
        a(f'''
        s_add_u32 s{sBeta}, s{sBeta}, 1
        s_cmp_lt_u32 s{sBeta}, s{sEnd}
        s_cbranch_scc0 K2_DRAIN
        ''')


def flush(a):
    t = EE
    A = lambda c, jj, ii: ACC + 16 * c + 4 * jj + ii
    V1 = lambda jj: t + jj
    V23 = lambda jj: t + 4 + 2 * jj
    V = lambda jj, k: V1(jj) if k == 0 else V23(jj) + k - 1
    aM, aP, Y, Z = t + 12, t + 13, t + 14, t + 15
    a('K2_FLUSH:')
    a(f'''
    s_mul_i32 s3, s{sG}, {8 * RS}
    v_add_u32 v{aM}, s3, v{vFl}
    s_lshl_b32 s3, s{sG}, 7
    v_add_u32 v{aP}, s3, v{vFp}
    s_mov_b32 s{sGp}, s{sG}
    ''')
    for c in range(4):
        for jj in range(4):
            if c == 0:
                a(f'v_mul_f32 v{V1(jj)}, v{WX}, v{A(c, jj, 1)}')
            else:
                a(f'v_fmac_f32 v{V1(jj)}, v{WX + c}, v{A(c, jj, 1)}')
        wp = vr(WX + (c & ~1), 2)
        s = c & 1
        for jj in range(4):
            if c == 0:
                a(f'v_pk_mul_f32 {vr(V23(jj), 2)}, {vr(A(c, jj, 2), 2)}, {wp} op_sel:[0,{s}] op_sel_hi:[1,{s}]')
            else:
                a(f'v_pk_fma_f32 {vr(V23(jj), 2)}, {vr(A(c, jj, 2), 2)}, {wp}, {vr(V23(jj), 2)} op_sel:[0,{s},0] op_sel_hi:[1,{s},1]')
    a(f'v_cmp_ge_u32 vcc, s{sBeta}, v{vGend}')
    for p in range(2):
        for k in range(3):
            a(f'v_permlane16_swap_b32 v{V(2 * p, k)}, v{V(2 * p + 1, k)}')
    a(f'''
    s_and_b32 vcc_lo, vcc_lo, 0x1fff
    s_bcnt1_i32_b32 s{sG}, vcc_lo
    ''')
    for p in range(2):
        for k in range(3):
            a(f'v_add_f32 v{V(2 * p, k)}, v{V(2 * p, k)}, v{V(2 * p + 1, k)}')
    a(f'v_readlane_b32 s{sGend}, v{vGend}, s{sG}')
    for k in range(3):
        a(f'v_add_f32_dpp v{V(1, k)}, v{V(0, k)}, v{V(0, k)} row_ror:8 row_mask:0xf bank_mask:0x3')
    for k in range(3):
        a(f'v_add_f32_dpp v{V(1, k)}, v{V(2, k)}, v{V(2, k)} row_ror:8 row_mask:0xf bank_mask:0xc')
    a(f'''
    v_add_f32_dpp v{Y}, v{V(1, 0)}, v{V(1, 0)} row_half_mirror row_mask:0xf bank_mask:0x5
    s_nop 0
    v_add_f32_dpp v{Z}, v{V(1, 2)}, v{V(1, 2)} row_half_mirror row_mask:0xf bank_mask:0xf
    v_add_f32_dpp v{Y}, v{V(1, 1)}, v{V(1, 1)} row_half_mirror row_mask:0xf bank_mask:0xa
    s_cmp_eq_u32 s{sFm}, 2
    v_add_f32_dpp v{Z}, v{Z}, v{Z} quad_perm:[1,0,3,2] row_mask:0xf bank_mask:0xf
    v_add_f32_dpp v{Y}, v{Y}, v{Y} quad_perm:[1,0,3,2] row_mask:0xf bank_mask:0xf
    s_nop 0
    v_add_f32_dpp v{Z}, v{Z}, v{Z} quad_perm:[2,3,0,1] row_mask:0xf bank_mask:0xf
    v_add_f32_dpp v{Y}, v{Y}, v{Y} quad_perm:[2,3,0,1] row_mask:0xf bank_mask:0xf
    s_cbranch_scc1 K2_FLRET
    s_cmp_eq_u32 s{sFm}, 0
    s_cbranch_scc1 K2_FLW
    K2_FLUSH2:
    ds_read_b32 v{t + 8}, v{aP}
    ds_read_b32 v{t + 9}, v{aP} offset:8
    ''')
    for hf in range(2):
        for jj in (2 * hf, 2 * hf + 1):
            for c in range(4):
                a(f'ds_read_b32 v{t + 4 * (jj & 1) + c}, v{aM} offset:{128 * c + 2 * RS * jj}')
        a('s_waitcnt lgkmcnt(0)')
        for jj in (2 * hf, 2 * hf + 1):
            for c in range(4):
                a(f'v_add_f32 v{A(c, jj, 0)}, v{A(c, jj, 0)}, v{t + 4 * (jj & 1) + c}')
    a(f'''
    v_add_f32 v{Y}, v{Y}, v{t + 8}
    v_add_f32 v{Z}, v{Z}, v{t + 9}
    K2_FLW:
    v_mov_b64 {vr(t + 8, 2)}, 0
    v_mov_b64 {vr(t + 10, 2)}, 0
    ds_write_b32 v{aP}, v{Y}
    ds_write_b32 v{aP}, v{Z} offset:8
    ''')
    for c in range(4):
        a(f'ds_write_b32 v{aM}, v{A(c, 0, 0)} offset:{128 * c}')
    a(f'''
    s_cmp_eq_u32 s{sGp}, 12
    s_cbranch_scc1 K2_FL1
    ''')
    for jj in range(1, 4):
        for c in range(4):
            a(f'ds_write_b32 v{aM}, v{A(c, jj, 0)} offset:{128 * c + 2 * RS * jj}')
    a('K2_FL1:')
    a(f's_cmp_eq_u32 s{sFm}, 2')
    a('s_waitcnt lgkmcnt(0)')
    a('s_cbranch_scc1 K2_FLRET')
    for c in range(4):
        a(mfma(ACC + 16 * c, t + 8, t + 8, '0'))
    a('K2_FLRET:')
    a(f's_setpc_b64 s[{sRet}:{sRet + 1}]')


def zero_acc(a):
    nz = (SPARE - MACC) // 16
    a(f'''
    v_mov_b64 v[32:33], 0
    v_mov_b64 v[34:35], 0
    v_lshlrev_b32 v36, 4, v{vT}
    v_add_u32 v36, {MACC}, v36
    ''')
    for i in range(nz // 512):
        a(f'ds_write_b128 v36, v[32:35] offset:{8192 * i}')
    a(f'''
    s_movk_i32 s3, {nz % 512}
    v_cmp_gt_u32 vcc, s3, v{vT}
    s_and_saveexec_b64 s[{sT0}:{sT0 + 1}], vcc
    ds_write_b128 v36, v[32:35] offset:{8192 * (nz // 512)}
    s_mov_b64 exec, -1
    ''')


def kd(name, vgpr, sgpr):
    return f'''.section .rodata,"a"
.p2align 6
.amdhsa_kernel {name}
  .amdhsa_next_free_vgpr {vgpr}
  .amdhsa_next_free_sgpr {sgpr}
  .amdhsa_accum_offset {(vgpr + 3) // 4 * 4}
  .amdhsa_group_segment_fixed_size 0
  .amdhsa_kernarg_size 88
  .amdhsa_user_sgpr_count 2
  .amdhsa_user_sgpr_kernarg_segment_ptr 1
  .amdhsa_system_sgpr_workgroup_id_x 1
  .amdhsa_float_denorm_mode_32 3
.end_amdhsa_kernel
'''


HEADER = f'''; EGNN layer: K1 bins the edges by destination bucket and builds B = h @ W2; K2 does the edge MLP,
; @launch kernel=egnn_k1_kernel grid=({K1_GRID},1,1) block=(512,1,1) lds=65536
; @launch kernel=egnn_k2_kernel grid=(256,1,1) block=(512,1,1) lds={LDS_TOTAL}
.amdgcn_target "amdgcn-amd-amdhsa--gfx950"
.text
'''


def build(**opt):
    OPT.update(opt)
    a = Asm()
    gen_k1(a)
    gen_k2(a)
    return HEADER + a.text() + kd('egnn_k1_kernel', 104, 64) + kd('egnn_k2_kernel', 256, 96)


if __name__ == '__main__':
    out = sys.argv[1] if len(sys.argv) > 1 else 'gather_scatter__cheap_equivariant_egnn__graph.s'
    opt = {}
    for x in sys.argv[2:]:
        k, v = x.split('=', 1)
        opt[k] = {'True': True, 'False': False}.get(v, v)
    open(out, 'w').write(build(**opt))
```

```python
import sys

N = 25000
E = 400000
NB = 98
NCH = 128
CH = 3128
CHB = CH * 8
WS_B = 0
WS_REC = 0x640000
WS_OFF = 0x960000
WS_W = 0x990000
WS_END = WS_W + 3 * 32768 + 4096
NLOG2E = 0xBFB8AA3B
NLN2 = 0xBF317218

OPT = dict(stamps=False, st_k1='sc1', st_out='', )


class Asm:
    def __init__(self):
        self.l = []

    def __call__(self, s):
        for x in s.split('\n'):
            x = x.strip()
            if x:
                self.l.append(x)

    def text(self):
        return '\n'.join((x if x.endswith(':') or x.startswith('.') else '    ' + x) for x in self.l) + '\n'


def vr(a, n):
    return f'v[{a}:{a + n - 1}]' if n > 1 else f'v{a}'


def sr(a, n):
    return f's[{a}:{a + n - 1}]' if n > 1 else f's{a}'


def srd(a, d, base, off, nrec, stride=0):
    if off == 0:
        a(f's_mov_b32 s{d}, s{base}')
        if stride:
            a(f's_or_b32 s{d + 1}, s{base + 1}, {stride << 16:#x}')
        else:
            a(f's_mov_b32 s{d + 1}, s{base + 1}')
    else:
        a(f's_add_u32 s{d}, s{base}, {off}')
        a(f's_addc_u32 s{d + 1}, s{base + 1}, 0')
        assert not stride
    a(f's_mov_b32 s{d + 2}, {nrec}')
    a(f's_mov_b32 s{d + 3}, 0x20000')


def mfma(d, A, B, C=None):
    c = vr(d, 16) if C is None else C
    return f'v_mfma_f32_32x32x16_bf16 {vr(d, 16)}, {vr(A, 4)}, {vr(B, 4)}, {c}'


K1_BIN, K1_GEMM, K1_PREP = NCH, 196, 13
K1_GRID = K1_BIN + K1_GEMM + K1_PREP


def k1stamp(a, k):
    if OPT['stamps']:
        a('s_memtime s[58:59]')
        a('s_waitcnt lgkmcnt(0)')
        a('s_sub_u32 s58, s58, s62')
        a(f'v_writelane_b32 v103, s58, {k}')


def k1end(a):
    if OPT['stamps']:
        k1stamp(a, 14)
        a('s_waitcnt vmcnt(0)')
        k1stamp(a, 15)
        a(f'''
        s_memrealtime s[58:59]
        s_waitcnt lgkmcnt(0)
        v_writelane_b32 v103, s60, 0
        v_writelane_b32 v103, s58, 1
        s_lshl_b32 s3, s2, 6
        s_add_u32 s3, s3, {0x1100000}
        ''')
        srd(a, 4, 52, 's3', 64)
        a('''
        v_mbcnt_lo_u32_b32 v0, -1, 0
        v_mbcnt_hi_u32_b32 v0, -1, v0
        v_lshlrev_b32 v0, 2, v0
        buffer_store_dword v103, v0, s[4:7], 0 offen
        ''')
    a('s_endpgm')


def gen_k1(a):
    st = OPT['st_k1']
    a('.p2align 8')
    a('.globl egnn_k1_kernel')
    a('.type egnn_k1_kernel,@function')
    a('egnn_k1_kernel:')
    if OPT['stamps']:
        a('s_memrealtime s[60:61]')
        a('s_memtime s[62:63]')
        a('v_mov_b32 v103, 0')
    a(f'''
    s_load_dwordx16 s[36:51], s[0:1], 0
    s_load_dwordx2 s[52:53], s[0:1], 80
    s_cmp_lt_u32 s2, {K1_BIN}
    s_cbranch_scc1 K1_BIN
    s_cmp_lt_u32 s2, {K1_BIN + K1_GEMM}
    s_cbranch_scc1 K1_GEMM
    s_cmp_lt_u32 s2, {K1_GRID - 1}
    s_cbranch_scc1 K1_PREP
    s_cmp_lt_u32 s2, {K1_GRID}
    s_cbranch_scc1 K1_CONST
    s_endpgm
    ''')
    HIST, BASE, SORTED = 0, 1024, 2048
    a('K1_BIN:')
    a(f'''
    v_lshlrev_b32 v1, 2, v0
    v_mov_b32 v2, 0
    s_mul_i32 s3, s2, {CH}
    v_add_u32 v3, s3, v1
    v_add_u32 v4, {391 * 4}, v3
    v_cmp_gt_u32 vcc, 256, v0
    s_and_saveexec_b64 s[20:21], vcc
    ds_write_b32 v1, v2 offset:{HIST}
    s_mov_b64 exec, s[20:21]
    s_mov_b32 s22, {E}
    v_cmp_gt_u32 s[24:25], s22, v3
    v_cmp_gt_u32 s[26:27], s22, v4
    v_cmp_gt_u32 vcc, 391, v0
    v_mov_b32 v5, 0x7fffff00
    s_and_b64 s[24:25], s[24:25], vcc
    s_and_b64 s[26:27], s[26:27], vcc
    v_lshlrev_b32 v6, 2, v3
    v_lshlrev_b32 v7, 2, v4
    v_lshlrev_b32 v8, 1, v3
    v_lshlrev_b32 v9, 1, v4
    v_cndmask_b32_e64 v6, v5, v6, s[24:25]
    v_cndmask_b32_e64 v7, v5, v7, s[26:27]
    v_cndmask_b32_e64 v8, v5, v8, s[24:25]
    v_cndmask_b32_e64 v9, v5, v9, s[26:27]
    s_waitcnt lgkmcnt(0)
    ''')
    srd(a, 4, 44, 0, E * 4)
    srd(a, 8, 42, 0, E * 4)
    srd(a, 12, 40, 0, E * 2)
    DST, SRC, EA, BK, RK, RC = 12, 20, 28, 32, 40, 48
    a(f'''
    buffer_load_dwordx4 {vr(DST, 4)}, v6, s[4:7], 0 offen
    buffer_load_dwordx4 {vr(DST + 4, 4)}, v7, s[4:7], 0 offen
    buffer_load_dwordx4 {vr(SRC, 4)}, v6, s[8:11], 0 offen
    buffer_load_dwordx4 {vr(SRC + 4, 4)}, v7, s[8:11], 0 offen
    buffer_load_dwordx2 {vr(EA, 2)}, v8, s[12:15], 0 offen
    buffer_load_dwordx2 {vr(EA + 2, 2)}, v9, s[12:15], 0 offen
    s_mul_i32 s3, s2, {CHB}
    s_add_u32 s3, s3, {WS_REC}
    ''')
    srd(a, 16, 52, 's3', CHB)
    a(f'''
    s_lshl_b32 s3, s2, 10
    s_add_u32 s3, s3, {WS_OFF}
    ''')
    srd(a, 28, 52, 's3', 1024)
    a(f'''
    s_movk_i32 s22, 21400
    s_movk_i32 s23, -98
    v_mov_b32 v10, 1
    s_barrier
    ''')
    k1stamp(a, 2)
    a('s_waitcnt vmcnt(4)')
    k1stamp(a, 3)
    for i in range(8):
        a(f'v_mul_u32_u24 v{BK + i}, s22, v{DST + i}')
    for i in range(8):
        a(f'v_lshrrev_b32 v{BK + i}, 21, v{BK + i}')
    for i in range(8):
        a(f'v_mad_i32_i24 v{DST + i}, v{BK + i}, s23, v{DST + i}')
    for i in range(8):
        a(f'v_lshlrev_b32 v{BK + i}, 2, v{BK + i}')
    for g in range(2):
        a(f's_mov_b64 exec, s[{24 + 2 * g}:{25 + 2 * g}]')
        for i in range(4 * g, 4 * g + 4):
            a(f'ds_add_rtn_u32 v{RK + i}, v{BK + i}, v10 offset:{HIST}')
    a('s_mov_b64 exec, -1')
    a('s_waitcnt vmcnt(0)')
    for i in range(8):
        a(f'v_lshl_or_b32 v{RC + 2 * i}, v{DST + i}, 16, v{SRC + i}')
        if i & 1:
            a(f'v_and_b32 v{RC + 2 * i + 1}, 0xffff0000, v{EA + i // 2}')
        else:
            a(f'v_lshlrev_b32 v{RC + 2 * i + 1}, 16, v{EA + i // 2}')
    a(f'''
    v_and_b32 v1, 63, v0
    v_lshlrev_b32 v1, 4, v1
    s_waitcnt lgkmcnt(0)
    s_barrier
    ''')
    k1stamp(a, 4)
    a(f'''
    ds_read_b128 v[4:7], v1 offset:{HIST}
    s_waitcnt lgkmcnt(0)
    v_add_u32 v12, v4, v5
    v_add3_u32 v14, v12, v6, v7
    v_add_u32 v13, v12, v6
    v_mov_b32 v15, v14
    s_nop 1
    v_add_u32_dpp v15, v15, v15 row_shr:1 row_mask:0xf bank_mask:0xf
    s_nop 1
    v_add_u32_dpp v15, v15, v15 row_shr:2 row_mask:0xf bank_mask:0xf
    s_nop 1
    v_add_u32_dpp v15, v15, v15 row_shr:4 row_mask:0xf bank_mask:0xf
    s_nop 1
    v_add_u32_dpp v15, v15, v15 row_shr:8 row_mask:0xf bank_mask:0xf
    s_nop 1
    v_add_u32_dpp v15, v15, v15 row_bcast:15 row_mask:0xa bank_mask:0xf
    s_nop 1
    v_add_u32_dpp v15, v15, v15 row_bcast:31 row_mask:0xc bank_mask:0xf
    v_sub_u32 v16, v15, v14
    v_add_u32 v17, v16, v4
    v_add_u32 v18, v16, v12
    v_add_u32 v19, v16, v13
    ds_write_b128 v1, v[16:19] offset:{BASE}
    ''')
    for i in range(8):
        a(f'ds_read_b32 v{20 + i}, v{BK + i} offset:{BASE}')
    a(f'''
    v_lshl_or_b32 v16, v4, 16, v16
    v_lshl_or_b32 v17, v5, 16, v17
    v_lshl_or_b32 v18, v6, 16, v18
    v_lshl_or_b32 v19, v7, 16, v19
    v_lshlrev_b32 v1, 4, v0
    buffer_store_dwordx4 v[16:19], v1, s[28:31], 0 offen {st}
    s_waitcnt lgkmcnt(0)
    ''')
    for i in range(8):
        a(f'v_add_lshl_u32 v{20 + i}, v{20 + i}, v{RK + i}, 3')
    for g in range(2):
        a(f's_mov_b64 exec, s[{24 + 2 * g}:{25 + 2 * g}]')
        for i in range(4 * g, 4 * g + 4):
            a(f'ds_write_b64 v{20 + i}, {vr(RC + 2 * i, 2)} offset:{SORTED}')
    a(f'''
    s_mov_b64 exec, -1
    s_movk_i32 s20, 8192
    s_movk_i32 s21, 16384
    s_movk_i32 s22, 24576
    s_waitcnt lgkmcnt(0)
    s_barrier
    ''')
    k1stamp(a, 5)
    for i in range(4):
        a(f'ds_read_b128 {vr(4 + 4 * i, 4)}, v1 offset:{SORTED + 8192 * i}')
    for i in range(4):
        a(f's_waitcnt lgkmcnt({3 - i})')
        a(f'buffer_store_dwordx4 {vr(4 + 4 * i, 4)}, v1, s[16:19], {["0", "s20", "s21", "s22"][i]} offen {st}')
    k1end(a)

    HT, WT = 0, 32768
    a('K1_GEMM:')
    a(f'''
    v_lshrrev_b32 v1, 6, v0
    v_and_b32 v0, 63, v0
    v_readfirstlane_b32 s24, v1                 ; wave
    s_sub_u32 s3, s2, {K1_BIN}
    s_lshl_b32 s20, s3, 15
    s_sub_u32 s21, {N * 256}, s20
    s_min_u32 s21, s21, 32768
    v_lshrrev_b32 v2, 4, v0
    v_and_b32 v3, 15, v0                        ; slot
    s_and_b32 s25, s24, 3
    s_lshl_b32 s25, s25, 2
    v_add_u32 v4, s25, v2                       ; row & 15
    v_xor_b32 v4, v4, v3
    v_lshlrev_b32 v4, 4, v4
    v_lshl_add_u32 v4, v2, 8, v4
    v_lshlrev_b32 v5, 2, v2
    v_xor_b32 v5, v5, v3
    v_lshlrev_b32 v5, 4, v5
    v_lshl_add_u32 v5, v2, 8, v5
    s_lshl_b32 s26, s24, 10
    s_waitcnt lgkmcnt(0)
    ''')
    srd(a, 4, 36, 's20', 's21')
    srd(a, 8, 46, 128 * 256, 32768)
    srd(a, 12, 52, 's20', 's21')
    for i in range(4):
        a(f'''
        s_add_u32 s27, s26, {8192 * i}
        s_add_u32 m0, s26, {HT + 8192 * i}
        s_add_u32 s28, s26, {WT + 8192 * i}
        buffer_load_dwordx4 v4, s[4:7], s27 offen lds
        s_mov_b32 m0, s28
        s_nop 0
        buffer_load_dwordx4 v5, s[8:11], s27 offen lds
        ''')
    a(f'''
    s_lshr_b32 s29, s24, 1                      ; nt
    s_and_b32 s30, s24, 1                       ; ch
    v_and_b32 v6, 31, v0                        ; i
    v_lshrrev_b32 v7, 5, v0                     ; h
    v_xor_b32 v8, v7, v3                        ; h ^ (i&15)
    v_lshlrev_b32 v8, 4, v8
    v_lshl_add_u32 v8, v6, 8, v8
    s_lshl_b32 s31, s29, 13
    v_add_u32 v8, s31, v8
    v_lshrrev_b32 v9, 2, v3                     ; r
    v_lshl_add_u32 v10, v7, 3, v9               ; 8h + r
    v_lshlrev_b32 v10, 8, v10
    v_and_b32 v11, 1, v2                        ; gq&1
    v_lshl_add_u32 v10, v11, 5, v10
    v_and_b32 v11, 3, v0                        ; cc
    v_lshl_add_u32 v10, v11, 3, v10
    s_lshl_b32 s31, s30, 1
    v_xor_b32 v11, s31, v9                      ; ct0 ^ r
    v_lshl_add_u32 v12, v11, 6, v10
    v_xor_b32 v13, 64, v12
    ''')
    for s in range(1, 8):
        a(f'v_xor_b32 v{16 + s}, {32 * s}, v8')
    a(f'''
    v_lshlrev_b32 v14, 10, v7
    v_lshl_add_u32 v14, v6, 2, v14
    s_lshl_b32 s31, s29, 13
    s_lshl_b32 s33, s30, 7
    s_add_u32 s31, s31, s33
    s_add_u32 s32, s31, 4096
    s_mov_b32 s34, {NLOG2E:#x}
    s_mov_b32 s35, {NLOG2E:#x}
    ''')
    k1stamp(a, 2)
    a('s_waitcnt vmcnt(0)')
    k1stamp(a, 3)
    a('s_barrier')
    k1stamp(a, 4)
    H, W0, W1, D0, D1 = 24, 40, 56, 72, 88
    for s in range(8):
        q = 4 * (s & 3)
        a(f'ds_read_b128 {vr(H + q, 4)}, v{8 if s == 0 else 16 + s} offset:{HT}')
        for rr in range(2):
            a(f'ds_read_b64_tr_b16 {vr(W0 + q + 2 * rr, 2)}, v12 offset:{WT + 4096 * s + 1024 * rr}')
        for rr in range(2):
            a(f'ds_read_b64_tr_b16 {vr(W1 + q + 2 * rr, 2)}, v13 offset:{WT + 4096 * s + 1024 * rr}')
        if s >= 2:
            k = s - 2
            q = 4 * (k & 3)
            a('s_waitcnt lgkmcnt(10)')
            a(mfma(D0, H + q, W0 + q, '0' if k == 0 else None))
            a(mfma(D1, H + q, W1 + q, '0' if k == 0 else None))
    for k in (6, 7):
        q = 4 * (k & 3)
        a(f's_waitcnt lgkmcnt({5 * (7 - k)})')
        a(mfma(D0, H + q, W0 + q))
        a(mfma(D1, H + q, W1 + q))
    a('s_nop 10')
    k1stamp(a, 5)
    for r in range(0, 16, 2):
        a(f'v_pk_mul_f32 {vr(D0 + r, 2)}, {vr(D0 + r, 2)}, s[34:35]')
    for r in range(0, 16, 2):
        a(f'v_pk_mul_f32 {vr(D1 + r, 2)}, {vr(D1 + r, 2)}, s[34:35]')
    for r in range(16):
        a(f'v_cvt_pk_bf16_f32 v{24 + r}, v{D0 + r}, v{D1 + r}')
        jj, ii = r >> 2, r & 3
        a(f'buffer_store_dword v{24 + r}, v14, s[12:15], {"s31" if jj < 2 else "s32"} offen offset:{(jj & 1) * 2048 + ii * 256} {st}')
    k1end(a)

    a('K1_PREP:')
    a(f'''
    s_sub_u32 s3, s2, {K1_BIN + K1_GEMM}
    s_lshr_b32 s20, s3, 2                       ; matrix
    s_and_b32 s21, s3, 3                        ; tile
    v_lshrrev_b32 v1, 6, v0                     ; s
    v_and_b32 v2, 31, v0                        ; i
    v_bfe_u32 v3, v0, 5, 1                      ; h
    ; column
    s_lshr_b32 s22, s21, 1
    s_lshl_b32 s22, s22, 6
    s_and_b32 s23, s21, 1
    s_cmp_eq_u32 s20, 0
    s_cbranch_scc0 K1_PREP_C1
    s_lshl_b32 s23, s23, 4
    v_bfe_u32 v4, v2, 2, 1
    v_lshlrev_b32 v4, 5, v4
    v_and_b32 v5, 3, v2
    v_lshl_add_u32 v4, v5, 2, v4
    v_lshrrev_b32 v5, 3, v2
    v_add_u32 v4, v4, v5
    s_branch K1_PREP_C2
    K1_PREP_C1:
    v_lshlrev_b32 v4, 1, v2
    K1_PREP_C2:
    s_add_u32 s22, s22, s23
    v_add_u32 v4, s22, v4                       ; column
    v_lshlrev_b32 v5, 4, v1
    v_lshl_add_u32 v5, v3, 3, v5                ; 16s+8h
    s_movk_i32 s24, 256
    s_movk_i32 s25, 512
    s_cmp_eq_u32 s20, 2
    s_cbranch_scc0 K1_PREP_R
    v_and_b32 v5, 1, v1
    v_lshlrev_b32 v5, 6, v5
    v_lshl_add_u32 v5, v3, 4, v5
    v_lshrrev_b32 v6, 1, v1
    v_lshl_add_u32 v5, v6, 2, v5
    v_add_u32 v5, 128, v5
    s_movk_i32 s24, 8192
    s_movk_i32 s25, 256
    K1_PREP_R:
    v_lshlrev_b32 v5, 8, v5
    v_lshl_add_u32 v5, v4, 1, v5
    s_waitcnt lgkmcnt(0)
    s_cmp_eq_u32 s20, 0
    s_cselect_b32 s4, s46, s50
    s_cselect_b32 s5, s47, s51
    s_mov_b32 s6, 65540
    s_mov_b32 s7, 0x20000
    s_lshl_b32 s3, s3, 13
    s_add_u32 s3, s3, {WS_W}
    ''')
    srd(a, 8, 52, 's3', 8192)
    a('s_mov_b32 s26, 0')
    for x in range(4):
        a(f'''
        s_add_u32 s27, s26, s24
        buffer_load_ushort v{8 + x}, v5, s[4:7], s26 offen
        buffer_load_ushort v{12 + x}, v5, s[4:7], s27 offen
        s_add_u32 s26, s26, s25
        ''')
    a(f'''
    v_lshlrev_b32 v1, 4, v0
    s_waitcnt vmcnt(0)
    v_lshl_or_b32 v8, v12, 16, v8
    v_lshl_or_b32 v9, v13, 16, v9
    v_lshl_or_b32 v10, v14, 16, v10
    v_lshl_or_b32 v11, v15, 16, v11
    buffer_store_dwordx4 v[8:11], v1, s[8:11], 0 offen {st}
    ''')
    k1end(a)
    a('K1_CONST:')
    a(f'''
    v_readfirstlane_b32 s3, v0
    s_nop 3
    s_cmp_lt_u32 s3, 64
    s_cbranch_scc0 K1_END
    v_and_b32 v2, 31, v0                        ; j
    v_lshrrev_b32 v3, 5, v0                     ; h
    v_lshrrev_b32 v4, 4, v2
    v_lshlrev_b32 v4, 6, v4
    v_and_b32 v5, 1, v2
    v_lshl_add_u32 v4, v5, 5, v4
    v_bfe_u32 v5, v2, 3, 1
    v_lshl_add_u32 v4, v5, 4, v4
    v_bfe_u32 v5, v2, 1, 2
    v_add_u32 v4, v4, v5                        ; feature(0,j)
    v_lshlrev_b32 v4, 1, v4
    v_lshl_add_u32 v5, v3, 4, v4
    s_waitcnt lgkmcnt(0)
    ''')
    srd(a, 4, 46, 65536, 516)
    srd(a, 8, 48, 0, 260)
    srd(a, 12, 52, WS_W + 3 * 32768, 4096)
    a(f'''
    buffer_load_ushort v8, v5, s[4:7], 0 offen
    buffer_load_ushort v9, v5, s[4:7], 0 offen offset:256
    buffer_load_ushort v10, v5, s[4:7], 0 offen offset:8
    buffer_load_ushort v11, v5, s[4:7], 0 offen offset:264
    buffer_load_ushort v12, v4, s[8:11], 0 offen
    buffer_load_ushort v13, v4, s[8:11], 0 offen offset:8
    buffer_load_ushort v14, v4, s[8:11], 0 offen offset:16
    buffer_load_ushort v15, v4, s[8:11], 0 offen offset:24
    v_lshlrev_b32 v1, 4, v0
    v_lshlrev_b32 v6, 3, v3
    v_sub_u32 v6, v2, v6                        ; d = j - 8h
    v_and_b32 v7, 1, v2
    v_lshlrev_b32 v7, 4, v7
    v_mov_b32 v16, 0x3f80
    v_lshlrev_b32 v7, v7, v16
    v_ashrrev_i32 v6, 1, v6
    ''')
    for x in range(8):
        sel = x if x < 4 else x + 4
        a(f'''
        v_cmp_eq_u32 vcc, {sel}, v6
        s_nop 1
        v_cndmask_b32_e64 v{20 + x}, 0, v7, vcc
        ''')
    a(f'''
    buffer_store_dwordx4 v[20:23], v1, s[12:15], 0 offen {st}
    buffer_store_dwordx4 v[24:27], v1, s[12:15], 0 offen offset:1024 {st}
    s_mov_b32 s20, {NLOG2E:#x}
    s_mov_b32 s21, {NLN2:#x}
    s_waitcnt vmcnt(2)
    ''')
    for x in range(8):
        a(f'v_lshlrev_b32 v{8 + x}, 16, v{8 + x}')
    for x in range(4):
        a(f'v_mul_f32 v{8 + x}, s20, v{8 + x}')
        a(f'v_mul_f32 v{12 + x}, s21, v{12 + x}')
    a(f'''
    v_cvt_pk_bf16_f32 v28, v8, v9
    v_cvt_pk_bf16_f32 v30, v10, v11
    v_lshlrev_b32 v16, 16, v28
    v_and_b32 v17, 0xffff0000, v28
    v_lshlrev_b32 v18, 16, v30
    v_and_b32 v19, 0xffff0000, v30
    v_sub_f32 v8, v8, v16
    v_sub_f32 v9, v9, v17
    v_sub_f32 v10, v10, v18
    v_sub_f32 v11, v11, v19
    v_cvt_pk_bf16_f32 v29, v8, v9
    v_cvt_pk_bf16_f32 v31, v10, v11
    buffer_store_dwordx4 v[28:31], v1, s[12:15], 0 offen offset:2048 {st}
    buffer_store_dwordx4 v[12:15], v1, s[12:15], 0 offen offset:3072 {st}
    ''')
    k1end(a)
    a('K1_END:')
    a('s_endpgm')


RS = 528
ATAB = 0
MACC = NB * RS
STG = 2 * NB * RS
PACC = STG + 4096
SPARE = PACC + 1664
PD = 110112
CNT = PD + 1568
LIST = CNT + 128
CAP = 2048
SBUF = LIST + (CAP + 128) * 8
LDS_TOTAL = SBUF + 32768
HT2 = MACC
WH1L = HT2 + 25600
assert WH1L + 32768 <= PD and SPARE <= PD and LDS_TOTAL <= 163840

ACC, CC, D0, D1, EE, MM, GG = 0, 64, 96, 112, 128, 144, 160
SF, PP, I0, I1, QQ, WX = 192, 196, 200, 204, 208, 212
IDX, AD, AB = 216, 218, 222
vLidx, vLpair, vLaoff, vSr, vSw, vLrec, vStg, vFl, vFp, vGend = range(224, 234)
REC, POSQ, PD4, SN, SAn, SAo, PRn, ZZ = 234, 236, 238, 242, 244, 245, 246, 248
vLane, vX0, vX1, vX2, vT, vX4 = 250, 251, 252, 253, 254, 255
vX3 = AD
RCD = 234

sB, sW, sRound, sMode, sQ, sO, sMore = 24, 25, 26, 27, 28, 29, 30
sBeta, sEnd, sG, sGend, sT = 31, 32, 33, 34, 35
sRet = 54
sM0, sM1, sVal = 56, 58, 60
sMask = 64
sC0 = 80
sT0, sT1, sT2, sT3 = 82, 83, 84, 85
sN0 = 86
sGp, sFm, sTail, sSer = 48, 49, 50, 51
sNv = 87
sStamp = 88


def stamp(a, k):
    if OPT['stamps']:
        a(f's_memtime s[{sStamp}:{sStamp + 1}]')
        a('s_waitcnt lgkmcnt(0)')
        a(f'v_writelane_b32 v{vX4}, s{sStamp}, {k}')


def gen_k2(a):
    so = OPT['st_out']
    a('.p2align 8')
    a('.globl egnn_k2_kernel')
    a('.type egnn_k2_kernel,@function')
    a('egnn_k2_kernel:')
    a(f'''
    s_cmp_lt_u32 s2, 256
    s_cbranch_scc1 K2_GO
    s_endpgm
    K2_GO:
    s_load_dwordx4 s[36:39], s[0:1], 0
    s_load_dwordx2 s[40:41], s[0:1], 64
    s_load_dwordx2 s[42:43], s[0:1], 80
    ''')
    if OPT['stamps']:
        a(f'v_mov_b32 v{vX4}, 0')
        a(f's_memtime s[{sStamp + 2}:{sStamp + 3}]')
        a(f's_memrealtime s[{sStamp + 4}:{sStamp + 5}]')
    a(f'''
    v_mov_b32 v{vT}, v0
    v_lshrrev_b32 v1, 6, v0
    v_and_b32 v{vLane}, 63, v0
    v_readfirstlane_b32 s{sW}, v1
    s_and_b32 s3, s2, 7
    s_lshl_b32 s3, s3, 5
    s_lshr_b32 s{sB}, s2, 3
    s_add_u32 s{sB}, s{sB}, s3
    s_mul_i32 s{sN0}, s{sB}, {NB}
    s_mov_b32 s{sRound}, 0
    s_mov_b32 s{sMode}, 0
    s_mov_b32 s{sQ}, 0
    s_mov_b32 s{sO}, 0
    s_sub_u32 s3, {N}, s{sN0}
    s_min_u32 s3, s3, {NB}
    s_lshl_b32 s{sT0}, s{sN0}, 8
    s_lshl_b32 s{sT1}, s3, 8
    s_mul_i32 s{sT2}, s{sN0}, 6
    s_add_u32 s{sT2}, s{sT2}, {N * 256}
    s_mul_i32 s{sT3}, s3, 6
    s_add_u32 s{sT3}, s{sT3}, 2
    s_mov_b32 s{sNv}, s3
    s_waitcnt lgkmcnt(0)
    ''')
    if OPT['stamps']:
        a(f'v_writelane_b32 v{vX4}, s{sStamp + 2}, 0')
    srd(a, 12, 42, WS_REC, WS_END - WS_REC)
    srd(a, 4, 42, 0, N, stride=256)
    srd(a, 8, 38, 0, N * 6)
    srd(a, 16, 36, f's{sT0}', f's{sT1}')
    srd(a, 20, 40, f's{sT0}', f's{sT1}')
    srd(a, 44, 40, f's{sT2}', f's{sT3}')
    a('K2_ROUND:')
    EN = SF
    a(f'''
    v_lshrrev_b32 v1, 4, v{vT}
    v_lshlrev_b32 v2, 10, v1
    s_lshl_b32 s3, s{sB}, 2
    s_add_u32 s3, s3, {WS_OFF - WS_REC}
    ''')
    for i in range(4):
        a(f'buffer_load_dword v{EN + i}, v2, s[12:15], s3 offen')
        if i < 3:
            a(f's_add_u32 s3, s3, 32768')
    a(f'''
    s_cmp_eq_u32 s{sRound}, 0
    s_cbranch_scc0 K2_NOBULK
    ''')
    W1F = 128
    a(f'''
    v_lshrrev_b32 v3, 4, v{vLane}
    v_and_b32 v4, 15, v{vLane}
    s_and_b32 s3, s{sW}, 3
    s_lshl_b32 s{sT1}, s3, 2
    v_add_u32 v5, s{sT1}, v3
    v_xor_b32 v5, v5, v4
    v_lshlrev_b32 v5, 4, v5
    v_lshl_add_u32 v5, v3, 8, v5
    v_lshlrev_b32 v6, 4, v{vLane}
    s_lshl_b32 s{sT0}, s{sW}, 10
    s_add_u32 m0, s{sT0}, {HT2}
    s_lshl_b32 s3, s3, 13
    s_add_u32 s3, s3, {WS_W - WS_REC}
    buffer_load_dwordx4 v5, s[16:19], s{sT0} offen lds
    ''')
    for i in (1, 2):
        a(f'''
        s_add_u32 m0, s{sT0}, {HT2 + 8192 * i}
        s_add_u32 s{sT1}, s{sT0}, {8192 * i}
        buffer_load_dwordx4 v5, s[16:19], s{sT1} offen lds
        ''')
    a(f'''
    v_xor_b32 v7, v3, v4
    v_lshlrev_b32 v7, 4, v7
    v_lshl_add_u32 v7, v3, 8, v7
    s_mov_b32 m0, {HT2 + 24576}
    s_movk_i32 s{sT1}, 24576
    buffer_load_dwordx4 v7, s[16:19], s{sT1} offen lds
    ''')
    for s in range(8):
        if s == 4:
            a('s_add_u32 s3, s3, 4096')
        a(f'buffer_load_dwordx4 {vr(W1F + 4 * s, 4)}, v6, s[12:15], s3 offen offset:{1024 * (s & 3)}')
    a(f'''
    s_lshl_b32 s{sT0}, s{sW}, 12
    s_add_u32 m0, s{sT0}, {WH1L}
    s_add_u32 s{sT0}, s{sT0}, {WS_W - WS_REC + 32768}
    ''')
    for i in range(4):
        a(f'buffer_load_dwordx4 v6, s[12:15], s{sT0} offen offset:{1024 * i} lds')
    a(f's_mov_b32 s3, {WS_W - WS_REC + 3 * 32768}')
    for i in range(4):
        a(f'buffer_load_dwordx4 {vr(I0 + 4 * i, 4)}, v6, s[12:15], s3 offen offset:{1024 * i}')
    a(f'''
    v_add_u32 v7, s{sN0}, v{vT}
    v_mul_u32_u24 v7, 6, v7
    v_and_b32 v7, -4, v7
    buffer_load_dwordx2 v[{vX1}:{vX2}], v7, s[8:11], 0 offen
    ''')
    NBULK = 4 + 8 + 4 + 4 + 1
    a(f'''
    K2_NOBULK:
    v_and_b32 v8, 31, v{vLane}                  ; j
    v_lshrrev_b32 v9, 5, v{vLane}               ; h
    v_and_b32 v10, 3, v{vLane}                  ; c
    v_lshlrev_b32 v{IDX + 1}, 4, v10
    v_lshl_add_u32 v{IDX + 1}, v9, 6, v{IDX + 1}
    v_lshlrev_b32 v{AB}, 4, v8
    v_mov_b32 v{AB + 1}, v{AB}
    v_bfe_u32 v11, v{vLane}, 2, 1
    v_bfe_u32 v12, v{vLane}, 3, 2
    v_lshl_add_u32 v{vX0}, v11, 2, v12          ; lambda(e)
    s_lshl_b32 s3, s{sW}, 9
    s_add_u32 s3, s3, {STG}
    v_lshl_add_u32 v{vLpair}, v{vX0}, 2, s3
    v_lshl_add_u32 v{vStg}, v{vLane}, 2, s3
    s_add_u32 s3, s3, 256
    v_lshl_add_u32 v{vLaoff}, v9, 4, s3
    s_lshl_b32 s3, s{sW}, 12
    s_add_u32 s3, s3, {SBUF}
    v_lshl_add_u32 v{vSw}, v{vLane}, 6, s3
    v_bfe_u32 v11, v{vLane}, 2, 2               ; r
    v_lshl_add_u32 v11, v9, 2, v11
    v_lshl_add_u32 v{vSr}, v11, 6, s3
    v_bfe_u32 v11, v{vLane}, 4, 1
    v_lshl_add_u32 v{vSr}, v11, 5, v{vSr}
    v_lshl_add_u32 v{vSr}, v10, 3, v{vSr}
    v_mul_u32_u24 v{vFl}, {RS}, v9
    v_lshl_add_u32 v{vFl}, v8, 2, v{vFl}
    v_add_u32 v{vFl}, {MACC}, v{vFl}
    v_bfe_u32 v12, v{vLane}, 3, 1               ; p
    v_lshl_add_u32 v12, v12, 1, v11
    v_lshl_add_u32 v12, v12, 1, v9
    v_bfe_u32 v11, v{vLane}, 2, 1
    v_lshlrev_b32 v11, 2, v11
    v_lshl_add_u32 v{vFp}, v12, 4, v11
    v_add_u32 v{vFp}, {PACC}, v{vFp}
    v_lshlrev_b32 v11, 1, v9
    v_cmp_eq_u32 s[{sM0}:{sM0 + 1}], v10, v11
    v_add_u32 v11, 1, v11
    v_cmp_eq_u32 s[{sM1}:{sM1 + 1}], v10, v11
    ''')
    a(f'''
    v_mov_b32 v12, 0
    v_mov_b32 v13, 0
    v_mov_b32 v14, 0
    v_mov_b32 v15, 0
    v_bfrev_b32 v16, 1
    v_mov_b32 v17, 0
    v_bfrev_b32 v18, 1
    v_mov_b32 v19, 0
    v_lshlrev_b32 v3, 4, v{vT}
    v_add_u32 v4, {LIST}, v3
    v_add_u32 v3, {SBUF}, v3
    ds_write_b128 v4, v[16:19]
    ds_write_b128 v4, v[16:19] offset:8192
    ds_write_b128 v3, v[12:15]
    ds_write_b128 v3, v[12:15] offset:8192
    ds_write_b128 v3, v[12:15] offset:16384
    ds_write_b128 v3, v[12:15] offset:24576
    v_lshlrev_b32 v3, 4, v{vLane}
    v_add_u32 v3, {LIST + 16384}, v3
    ds_write_b128 v3, v[16:19]
    v_and_b32 v3, 31, v{vLane}
    v_lshlrev_b32 v3, 2, v3
    v_add_u32 v3, {CNT}, v3
    ds_write_b32 v3, v12
    v_and_b32 v3, 15, v{vT}
    v_lshl_add_u32 v3, v3, 1, s{sO}             ; o + 2*(t&15)
    v_mul_u32_u24 v4, {CHB}, v1
    v_lshl_add_u32 v4, v3, 3, v4
    v_bfrev_b32 v5, 1
    s_cmp_eq_u32 s{sRound}, 0
    s_cbranch_scc1 K2_W0
    s_waitcnt vmcnt(0)
    K2_W0:
    s_waitcnt vmcnt({NBULK})
    ''')
    stamp(a, 1)
    for i in range(4):
        a(f'''
        v_lshrrev_b32 v{8 + i}, 16, v{EN + i}
        v_and_b32 v{EN + i}, 0xffff, v{EN + i}
        v_sub_u32 v{12 + i}, v{8 + i}, v3
        v_lshl_add_u32 v{EN + i}, v{EN + i}, 3, v4
        v_cmp_lt_i32 s[{sMask + 4 * i}:{sMask + 4 * i + 1}], 0, v{12 + i}
        v_cmp_lt_i32 s[{sMask + 4 * i + 2}:{sMask + 4 * i + 3}], 1, v{12 + i}
        ''')
    a(f'''
    s_cmp_eq_u32 s{sMode}, 0
    s_cbranch_scc1 K2_ALLQ
    ''')
    for i in range(4):
        a(f'''
        s_cmp_eq_u32 s{sQ}, {i}
        s_cselect_b64 s[{sMask + 4 * i}:{sMask + 4 * i + 1}], s[{sMask + 4 * i}:{sMask + 4 * i + 1}], 0
        s_cselect_b64 s[{sMask + 4 * i + 2}:{sMask + 4 * i + 3}], s[{sMask + 4 * i + 2}:{sMask + 4 * i + 3}], 0
        ''')
    a('K2_ALLQ:')
    a('s_mov_b32 s3, 0')
    for i in range(4):
        a(f'''
        v_cndmask_b32_e64 v{EN + i}, v5, v{EN + i}, s[{sMask + 4 * i}:{sMask + 4 * i + 1}]
        buffer_load_dwordx4 {vr(RCD + 4 * i, 4)}, v{EN + i}, s[12:15], s3 offen
        ''')
        if i < 3:
            a(f's_add_u32 s3, s3, {32 * CHB}')
    a(f'''
    v_max3_u32 v8, v8, v9, v10
    v_max_u32 v{vX3}, v8, v11
    s_waitcnt vmcnt(4) lgkmcnt(0)
    s_barrier
    ''')
    stamp(a, 2)
    a(f'''
    s_cmp_eq_u32 s{sRound}, 0
    s_cbranch_scc0 K2_NOGEMM
    ''')
    H0, H1, AO, WB = 0, 32, 96, 160
    T = SF
    a(f'''
    v_add_u32 v{T}, s{sN0}, v{vT}
    v_lshlrev_b32 v{T}, 4, v{T}
    v_alignbit_b32 v{T + 1}, v{vX2}, v{vX1}, v{T}
    v_lshrrev_b32 v{T + 6}, v{T}, v{vX2}
    v_lshlrev_b32 v{T + 4}, 16, v{T + 1}
    v_and_b32 v{T + 5}, 0xffff0000, v{T + 1}
    v_lshlrev_b32 v{T + 6}, 16, v{T + 6}
    v_mov_b32 v{T + 7}, 0
    v_lshlrev_b32 v{T}, 4, v{vT}
    v_add_u32 v{T}, {PD}, v{T}
    v_cmp_gt_u32 vcc, {NB}, v{vT}
    s_and_saveexec_b64 s[{sT0}:{sT0 + 1}], vcc
    ds_write_b128 v{T}, {vr(T + 4, 4)}
    s_mov_b64 exec, s[{sT0}:{sT0 + 1}]
    v_and_b32 v{T}, 31, v{vLane}                ; i
    v_lshrrev_b32 v{T + 1}, 5, v{vLane}         ; h
    v_and_b32 v{T + 2}, 15, v{vLane}
    v_xor_b32 v{T + 2}, v{T + 2}, v{T + 1}
    v_lshlrev_b32 v{T + 2}, 4, v{T + 2}
    v_lshl_add_u32 v{T + 2}, v{T}, 8, v{T + 2}
    s_lshr_b32 s3, s{sW}, 1                     ; nt
    s_lshl_b32 s{sT0}, s3, 13
    v_add_u32 v{T + 2}, s{sT0}, v{T + 2}
    s_and_b32 s{sT0}, s{sW}, 1
    s_lshl_b32 s{sT0}, s{sT0}, 14
    s_add_u32 s{sT0}, s{sT0}, {WH1L}
    v_lshl_add_u32 v{T + 3}, v{vLane}, 4, s{sT0}
    ''')
    for s in range(8):
        if s:
            a(f'v_xor_b32 v{T + 4}, {32 * s}, v{T + 2}')
        a(f'ds_read_b128 {vr(H0 + 4 * s, 4)}, v{T + 4 if s else T + 2} offset:{HT2}')
        a(f'v_xor_b32 v{T + 5}, {8192 + 32 * s}, v{T + 2}')
        a(f'ds_read_b128 {vr(H1 + 4 * s, 4)}, v{T + 5} offset:{HT2}')
        if s >= 4:
            k = s - 4
            a(f's_waitcnt lgkmcnt(8)')
            a(mfma(AO, W1F + 4 * k, H0 + 4 * k, '0' if k == 0 else None))
            a(mfma(AO + 16, W1F + 4 * k, H1 + 4 * k, '0' if k == 0 else None))
    for k in range(4, 8):
        a(f'ds_read_b128 {vr(WB + 8 * (k - 4), 4)}, v{T + 3} offset:{2048 * (k - 4)}')
        a(f'ds_read_b128 {vr(WB + 8 * (k - 4) + 4, 4)}, v{T + 3} offset:{2048 * (k - 4) + 1024}')
        a(f's_waitcnt lgkmcnt(8)')
        a(mfma(AO, W1F + 4 * k, H0 + 4 * k))
        a(mfma(AO + 16, W1F + 4 * k, H1 + 4 * k))
    for s in range(8):
        a(f'ds_read_b128 {vr(W1F + 4 * s, 4)}, v{T + 3} offset:{8192 + 1024 * s}')
        a(f's_waitcnt lgkmcnt(8)')
        a(mfma(CC, H0 + 4 * s, WB + 4 * s, '0' if s == 0 else None))
    a(f'''
    s_mov_b32 s{sC0}, {NLOG2E:#x}
    s_mov_b32 s{sC0 + 1}, {NLOG2E:#x}
    s_lshl_b32 s{sT0}, s3, 5
    v_add_u32 v{T + 4}, s{sT0}, v{T}
    v_xor_b32 v{T + 5}, 32, v{T + 4}
    v_mul_u32_u24 v{T + 6}, {RS}, v{T + 4}
    v_mul_u32_u24 v{T + 7}, {RS}, v{T + 5}
    s_and_b32 s3, s{sW}, 3
    s_lshl_b32 s3, s3, 7
    v_lshl_add_u32 v{T + 1}, v{T + 1}, 4, s3
    v_add_u32 v{T + 6}, v{T + 6}, v{T + 1}
    v_add_u32 v{T + 7}, v{T + 7}, v{T + 1}
    s_movk_i32 s3, {NB}
    v_cmp_gt_u32 s[{sT0}:{sT0 + 1}], s3, v{T + 4}
    v_cmp_gt_u32 s[{sT2}:{sT2 + 1}], s3, v{T + 5}
    ''')
    for s in range(8):
        a(f's_waitcnt lgkmcnt({7 - s})')
        a(mfma(CC + 16, H0 + 4 * s, W1F + 4 * s, '0' if s == 0 else None))
    for r in range(0, 32, 2):
        a(f'v_pk_mul_f32 {vr(AO + r, 2)}, {vr(AO + r, 2)}, s[{sC0}:{sC0 + 1}]')
    a(f's_mov_b64 exec, s[{sT0}:{sT0 + 1}]')
    for jj in range(4):
        a(f'ds_write_b128 v{T + 6}, {vr(AO + 4 * jj, 4)} offset:{ATAB + 32 * jj}')
    a(f's_mov_b64 exec, s[{sT2}:{sT2 + 1}]')
    for jj in range(4):
        a(f'ds_write_b128 v{T + 7}, {vr(AO + 16 + 4 * jj, 4)} offset:{ATAB + 32 * jj}')
    a('s_mov_b64 exec, -1')
    for r in range(0, 32, 2):
        a(f'v_pk_mul_f32 {vr(CC + r, 2)}, {vr(CC + r, 2)}, s[{sC0}:{sC0 + 1}]')
    a('K2_NOGEMM:')
    stamp(a, 3)
    G4, RK = 0, 8
    a(f'''
    v_mov_b32 v16, 1
    v_mov_b32 v17, {CNT}
    s_add_u32 s3, s{sO}, 32
    v_cmp_lt_u32 vcc, s3, v{vX3}
    s_and_saveexec_b64 s[{sT0}:{sT0 + 1}], vcc
    ds_write_b32 v17, v16 offset:64
    s_mov_b64 exec, -1
    s_waitcnt vmcnt(0)
    ''')
    for x in range(8):
        a(f'v_lshrrev_b32 v{G4 + x}, 17, v{RCD + 2 * x}')
        a(f'v_and_b32 v{G4 + x}, 0x3c, v{G4 + x}')
        a(f'v_add_u32 v{24 + x}, {CNT}, v{G4 + x}')
    for x in range(8):
        a(f's_mov_b64 exec, s[{sMask + 2 * x}:{sMask + 2 * x + 1}]')
        a(f'ds_add_rtn_u32 v{RK + x}, v{24 + x}, v16')
    a(f'''
    s_mov_b64 exec, -1
    v_and_b32 v18, 15, v{vLane}
    v_lshl_add_u32 v18, v18, 2, v17
    s_waitcnt lgkmcnt(0)
    s_barrier
    ds_read_b32 v19, v18
    ds_read_b32 v20, v17 offset:64
    s_waitcnt lgkmcnt(0)
    v_add_u32 v19, 15, v19
    v_lshrrev_b32 v19, 4, v19
    v_readfirstlane_b32 s{sMore}, v20
    v_mov_b32 v{vGend}, v19
    v_mov_b32 v21, v19
    s_nop 0
    v_add_u32_dpp v{vGend}, v{vGend}, v{vGend} row_shr:1 row_mask:0xf bank_mask:0xf
    s_nop 1
    v_add_u32_dpp v{vGend}, v{vGend}, v{vGend} row_shr:2 row_mask:0xf bank_mask:0xf
    s_nop 1
    v_add_u32_dpp v{vGend}, v{vGend}, v{vGend} row_shr:4 row_mask:0xf bank_mask:0xf
    s_nop 1
    v_add_u32_dpp v{vGend}, v{vGend}, v{vGend} row_shr:8 row_mask:0xf bank_mask:0xf
    v_sub_u32 v19, v{vGend}, v19
    v_readlane_b32 s{sT}, v{vGend}, 15
    v_lshlrev_b32 v19, 7, v19
    v_add_u32 v19, {LIST}, v19
    s_cmp_gt_u32 s{sT}, {CAP // 16}
    s_cbranch_scc1 K2_OVER
    s_lshr_b32 s{sT0}, s{sT}, 3
    v_cmp_lt_u32 vcc, s{sT0}, v21
    s_and_b32 s{sSer}, vcc_lo, 0x1fff
    s_mov_b32 s{sFm}, s{sRound}
    s_mov_b32 s{sTail}, 0
    v_cmp_eq_u32 vcc, 0, v21
    s_and_b32 s3, vcc_lo, 0x1fff
    s_cbranch_scc0 K2_NOZERO
    s_cmp_eq_u32 s{sRound}, 0
    s_cbranch_scc0 K2_NOZERO
    s_call_b64 s[{sRet}:{sRet + 1}], K2_ZERO
    K2_NOZERO:
    ''')
    for x in range(8):
        a(f'ds_bpermute_b32 v{24 + x}, v{G4 + x}, v19')
    a(f'''
    s_lshr_b32 s{sT0}, s{sT}, 3
    s_and_b32 s{sT1}, s{sT}, 7
    s_mul_i32 s{sBeta}, s{sT0}, s{sW}
    s_min_u32 s{sT2}, s{sW}, s{sT1}
    s_add_u32 s{sBeta}, s{sBeta}, s{sT2}
    s_cmp_lt_u32 s{sW}, s{sT1}
    s_addc_u32 s{sEnd}, s{sBeta}, s{sT0}
    s_lshl_b32 s3, s{sBeta}, 7
    s_add_u32 s3, s3, {LIST}
    v_lshl_add_u32 v{vLidx}, v{vX0}, 3, s3
    v_lshl_add_u32 v{vLrec}, v{vLane}, 3, s3
    v_cmp_ge_u32 vcc, s{sBeta}, v{vGend}
    s_and_b32 vcc_lo, vcc_lo, 0x1fff
    s_bcnt1_i32_b32 s{sG}, vcc_lo
    s_waitcnt lgkmcnt(0)
    ''')
    for x in range(8):
        a(f'v_lshl_add_u32 v{24 + x}, v{RK + x}, 3, v{24 + x}')
    a(f'v_readlane_b32 s{sGend}, v{vGend}, s{sG}')
    for x in range(8):
        a(f's_mov_b64 exec, s[{sMask + 2 * x}:{sMask + 2 * x + 1}]')
        a(f'ds_write_b64 v{24 + x}, {vr(RCD + 2 * x, 2)}')
    a(f'''
    s_mov_b64 exec, -1
    s_waitcnt lgkmcnt(0)
    s_barrier
    ''')
    stamp(a, 4)
    a(f'''
    ds_read_b64 {vr(REC, 2)}, v{vLrec}
    ds_read_u16 v0, v{vLidx}
    ds_read_u16 v2, v{vLidx} offset:64
    ds_read_u16 v4, v{vLidx} offset:128
    ds_read_u16 v6, v{vLidx} offset:192
    ds_read_u16 v{IDX}, v{vLidx} offset:256
    v_mov_b32 v1, v{IDX + 1}
    v_mov_b32 v3, v{IDX + 1}
    v_mov_b32 v5, v{IDX + 1}
    v_mov_b32 v7, v{IDX + 1}
    s_add_u32 s3, s{sBeta}, 1
    s_cmp_lt_u32 s{sBeta}, s{sEnd}
    s_cselect_b32 s6, {N}, 0
    s_waitcnt lgkmcnt(5)
    ''')
    stage1(a)
    a('s_waitcnt lgkmcnt(1)')
    for t in range(4):
        if t == 2:
            a(f's_cmp_lt_u32 s3, s{sEnd}')
            a(f's_cselect_b32 s6, {N}, 0')
        a(f'buffer_load_dwordx4 {vr(GG + 8 * t, 4)}, v[{2 * t}:{2 * t + 1}], s[4:7], 0 idxen offen')
        a(f'buffer_load_dwordx4 {vr(GG + 8 * t + 4, 4)}, v[{2 * t}:{2 * t + 1}], s[4:7], 0 idxen offen offset:128')
    a(f'''
    v_mov_b64 {vr(ZZ, 2)}, 0
    v_mov_b64 v[8:9], 0
    v_mov_b64 v[10:11], 0
    s_nop 1
    ''')
    a(mfma(16, 8, 8, '0'))
    a(mfma(32, 8, 8, '0'))
    a(mfma(48, 8, 8, '0'))
    a(mfma(MM, 8, 8, '0'))
    a(f'''
    v_mov_b64 {vr(SF, 2)}, 0
    v_mov_b64 {vr(SF + 2, 2)}, 0
    v_mov_b64 {vr(PP, 2)}, 0
    v_mov_b64 {vr(PP + 2, 2)}, 0
    v_mov_b32 v{SAo}, v{vSw}
    s_waitcnt lgkmcnt(0)
    ''')
    a(mfma(0, SF, SF, '0'))
    a(f'''
    s_cmp_lt_u32 s{sBeta}, s{sEnd}
    s_cbranch_scc0 K2_WAVE_DONE
    s_waitcnt vmcnt(8)
    ''')
    stamp(a, 5)
    stage2(a)
    stage_w_aoff(a)
    stage_w_pair(a)
    stage_w_s(a)
    a(f'''
    ds_read_b128 {vr(AD, 4)}, v{vLaoff}
    s_mov_b64 exec, s[{sM0}:{sM0 + 1}]
    ds_read2_b32 {vr(PP, 2)}, v{vLpair} offset0:0 offset1:0
    s_mov_b64 exec, s[{sM1}:{sM1 + 1}]
    ds_read2_b32 {vr(PP + 2, 2)}, v{vLpair} offset0:0 offset1:0
    s_mov_b64 exec, -1
    s_waitcnt lgkmcnt(2)
    v_lshl_add_u64 {vr(AD, 2)}, {vr(AD, 2)}, 0, {vr(AB, 2)}
    v_lshl_add_u64 {vr(AD + 2, 2)}, {vr(AD + 2, 2)}, 0, {vr(AB, 2)}
    ''')
    for jj in range(4):
        a(f'ds_read_b128 {vr(D0 + 4 * jj, 4)}, v{AD + jj}')
    a(f'''
    ds_read_b128 {vr(AD, 4)}, v{vLaoff} offset:32
    s_waitcnt vmcnt(6) lgkmcnt(0)
    ''')
    a(mfma(D0, PP, QQ))
    a(mfma(D0, GG, I0))
    a(mfma(D0, GG + 4, I1))
    a(f'''
    v_lshl_add_u64 {vr(AD, 2)}, {vr(AD, 2)}, 0, {vr(AB, 2)}
    v_lshl_add_u64 {vr(AD + 2, 2)}, {vr(AD + 2, 2)}, 0, {vr(AB, 2)}
    s_nop 7
    ''')
    stamp(a, 6)
    a('.p2align 6')
    a('K2_LOOP:')
    for tau in range(8):
        slot(a, tau)
    a('s_branch K2_LOOP')
    a('K2_DRAIN:')
    a('s_nop 0')
    for c in range(4):
        a(mfma(ACC + 16 * c, SF, MM + 4 * c))
    a(f'''
    s_cmp_eq_u32 s{sBeta}, s{sGend}
    s_cselect_b32 s{sFm}, s{sFm}, 2
    s_cselect_b32 s{sTail}, 0, 1
    s_nop 8
    s_call_b64 s[{sRet}:{sRet + 1}], K2_FLUSH
    K2_WAVE_DONE:
    ''')
    stamp(a, 7)
    a(f'''
    s_cmp_lg_u32 s{sMode}, 0
    s_cselect_b32 s3, 3, 0
    s_cmp_lt_u32 s{sQ}, s3
    s_cselect_b32 s{sT3}, 1, 0
    s_or_b32 s3, s{sT3}, s{sMore}
    s_cbranch_scc1 K2_NOPRE
    ''')
    epi_prefetch(a)
    a(f'''
    K2_NOPRE:
    s_waitcnt lgkmcnt(0)
    s_barrier
    s_mov_b32 s{sGend}, 0
    K2_TAILS:
    s_cmp_eq_u32 s{sSer}, 0
    s_cselect_b32 s3, s{sW}, s{sGend}
    s_cmp_eq_u32 s3, s{sW}
    s_cselect_b32 s3, s{sTail}, 0
    s_cmp_eq_u32 s3, 0
    s_cbranch_scc1 K2_NOTAIL
    s_call_b64 s[{sRet}:{sRet + 1}], K2_FLUSH2
    K2_NOTAIL:
    s_cmp_eq_u32 s{sSer}, 0
    s_cbranch_scc1 K2_TAILD
    s_add_u32 s{sGend}, s{sGend}, 1
    s_cmp_lt_u32 s{sGend}, 8
    s_cbranch_scc0 K2_TAILD
    s_barrier
    s_branch K2_TAILS
    K2_TAILD:
    s_or_b32 s3, s{sT3}, s{sMore}
    s_cbranch_scc0 K2_EPI
    s_add_u32 s{sQ}, s{sQ}, 1
    s_cmp_lg_u32 s{sT3}, 0
    s_cbranch_scc1 K2_NEXT
    s_mov_b32 s{sMode}, 0
    s_mov_b32 s{sQ}, 0
    s_add_u32 s{sO}, s{sO}, 32
    K2_NEXT:
    s_mov_b32 s{sRound}, 1
    s_waitcnt vmcnt(0) lgkmcnt(0)
    s_barrier
    s_branch K2_ROUND
    K2_OVER:
    s_mov_b32 s{sMode}, 1
    s_mov_b32 s{sQ}, 0
    s_cmp_eq_u32 s{sRound}, 0
    s_cbranch_scc0 K2_NEXT
    s_call_b64 s[{sRet}:{sRet + 1}], K2_ZERO
    s_branch K2_NEXT
    K2_ZERO:
    ''')
    zero_acc(a)
    a(f's_setpc_b64 s[{sRet}:{sRet + 1}]')
    flush(a)
    HR, MB, WF, HL, HH = 192, 96, 128, 128, 144
    a('K2_EPI:')
    a('s_nop 1')
    a('s_waitcnt vmcnt(16)')
    a('s_barrier')
    stamp(a, 8)
    for s in range(8):
        a(f'ds_read_b128 {vr(8 * s, 4)}, v{vX1} offset:{MACC + 64 * s}')
        a(f'ds_read_b128 {vr(8 * s + 4, 4)}, v{vX1} offset:{MACC + 64 * s + 16}')
        a(f'ds_read_b128 {vr(WF + 8 * s, 4)}, v{vX0} offset:{1024 * s}')
        a(f'ds_read_b128 {vr(WF + 8 * s + 4, 4)}, v{vX0} offset:{8192 + 1024 * s}')
        if s >= 2:
            epi_step(a, s - 2, 8, MB, WF)
    epi_step(a, 6, 4, MB, WF)
    epi_step(a, 7, 0, MB, WF)
    a(f'''
    s_cmp_lt_u32 s{sW}, 2
    s_cbranch_scc0 K2_NOPOS
    v_lshlrev_b32 v0, 4, v{vT}
    v_add_u32 v1, {PD}, v0
    v_add_u32 v0, {PACC}, v0
    ds_read_b128 v[4:7], v1
    ds_read_b128 v[8:11], v0
    v_mul_u32_u24 v2, 6, v{vT}
    s_waitcnt lgkmcnt(0)
    v_add_f32 v4, v4, v8
    v_add_f32 v5, v5, v9
    v_add_f32 v6, v6, v10
    v_cvt_pk_bf16_f32 v4, v4, v5
    v_cvt_pk_bf16_f32 v6, v6, v6
    v_cmp_gt_u32 vcc, s{sNv}, v{vT}
    s_and_saveexec_b64 s[{sT2}:{sT2 + 1}], vcc
    s_cbranch_execz K2_NOPOS1
    buffer_store_short v4, v2, s[44:47], 0 offen {so}
    buffer_store_short_d16_hi v4, v2, s[44:47], 0 offen offset:2 {so}
    buffer_store_short v6, v2, s[44:47], 0 offen offset:4 {so}
    s_mov_b64 exec, -1
    s_waitcnt vmcnt(3)
    s_branch K2_HROK
    K2_NOPOS1:
    s_mov_b64 exec, -1
    K2_NOPOS:
    s_waitcnt vmcnt(0)
    K2_HROK:
    ''')
    for r in range(16):
        a(f'v_lshlrev_b32 v{HL + r}, 16, v{HR + r}')
        a(f'v_and_b32 v{HH + r}, 0xffff0000, v{HR + r}')
    for u in range(2):
        for r in range(16):
            a(f'v_exp_f32 v{16 * u + r}, v{CC + 16 * u + r}')
        for r in range(0, 16, 2):
            a(f'v_pk_add_f32 {vr(16 * u + r, 2)}, {vr(16 * u + r, 2)}, 1.0 op_sel_hi:[1,0]')
        for r in range(16):
            a(f'v_rcp_f32 v{16 * u + r}, v{16 * u + r}')
        for r in range(0, 16, 2):
            a(f'v_pk_mul_f32 {vr(16 * u + r, 2)}, {vr(16 * u + r, 2)}, {vr(CC + 16 * u + r, 2)}')
        for r in range(0, 16, 2):
            a(f'v_pk_fma_f32 {vr(16 * u + r, 2)}, {vr(16 * u + r, 2)}, s[{sC0}:{sC0 + 1}], {vr((HL, HH)[u] + r, 2)}')
    for r in range(16):
        jj, ii = r >> 2, r & 3
        a(f'v_cvt_pk_bf16_f32 v{32 + r}, v{r}, v{16 + r}')
        a(f'buffer_store_dword v{32 + r}, v{vX3}, s[20:23], s{sT0 if jj < 2 else sT1} offen offset:{(jj & 1) * 2048 + ii * 256} {so}')
    if OPT['stamps']:
        stamp(a, 9)
        a('s_waitcnt vmcnt(0)')
        stamp(a, 10)
        a(f'''
        s_memrealtime s[38:39]
        s_waitcnt lgkmcnt(0)
        v_writelane_b32 v{vX4}, s{sStamp + 4}, 62
        v_writelane_b32 v{vX4}, s38, 63
        s_lshl_b32 s3, s2, 3
        s_add_u32 s3, s3, s{sW}
        s_lshl_b32 s3, s3, 8
        s_add_u32 s3, s3, {0x1000000}
        ''')
        srd(a, 12, 42, 's3', 256)
        a(f'''
        v_lshlrev_b32 v0, 2, v{vLane}
        buffer_store_dword v{vX4}, v0, s[12:15], 0 offen
        ''')
        if OPT.get('dbg'):
            a(f'''
            s_load_dwordx2 s[36:37], s[0:1], 72
            s_memrealtime s[38:39]
            s_waitcnt lgkmcnt(0)
            s_sub_u32 s38, s38, s{sStamp + 4}
            v_readlane_b32 s3, v{vX4}, 0
            s_nop 3
            v_subrev_u32 v{vX4}, s3, v{vX4}
            v_writelane_b32 v{vX4}, s38, 0
            s_or_b32 s3, s2, s{sW}
            s_cmp_eq_u32 s3, 0
            s_cselect_b32 s3, 64, 0
            ''')
            srd(a, 12, 36, 0, 's3')
            srd(a, 16, 42, 0x1100000, 64 * K1_GRID)
            a(f'''
            v_lshlrev_b32 v1, 6, v{vLane}
            v_mov_b32 v4, -1
            v_mov_b32 v5, 0
            ''')
            for i in range(6):
                a(f'''
                v_min_u32 v2, {64 * (K1_GRID - 1)}, v1
                buffer_load_dwordx2 v[6:7], v2, s[16:19], 0 offen
                v_add_u32 v1, 4096, v1
                s_waitcnt vmcnt(0)
                v_subrev_u32 v6, s{sStamp + 4}, v6
                v_subrev_u32 v7, s{sStamp + 4}, v7
                v_add_u32 v6, 0x10000, v6
                v_add_u32 v7, 0x10000, v7
                v_min_u32 v4, v4, v6
                v_max_u32 v5, v5, v7
                ''')
            for d in ('row_shr:1', 'row_shr:2', 'row_shr:4', 'row_shr:8', 'row_bcast:15', 'row_bcast:31'):
                a(f'''
                s_nop 1
                v_min_u32_dpp v4, v4, v4 {d} row_mask:0xf bank_mask:0xf
                v_max_u32_dpp v5, v5, v5 {d} row_mask:0xf bank_mask:0xf
                ''')
            a(f'''
            s_nop 1
            v_readlane_b32 s36, v4, 63
            v_readlane_b32 s37, v5, 63
            s_nop 3
            s_sub_u32 s36, 0x10000, s36
            s_sub_u32 s37, 0x10000, s37
            v_writelane_b32 v{vX4}, s36, 11
            v_writelane_b32 v{vX4}, s37, 12
            ''')
            a(f'buffer_store_dword v{vX4}, v0, s[12:15], 0 offen')
    a('s_endpgm')


def epi_prefetch(a):
    HR = 192
    a(f'''
    v_lshlrev_b32 v{vX0}, 4, v{vLane}
    s_lshl_b32 s{sT0}, s{sW}, 12
    s_add_u32 m0, s{sT0}, {SBUF}
    s_add_u32 s{sT0}, s{sT0}, {WS_W - WS_REC + 65536}
    v_and_b32 v{vX1}, 31, v{vLane}
    v_lshrrev_b32 v{vX2}, 5, v{vLane}
    s_waitcnt lgkmcnt(0)
    ''')
    for i in range(4):
        a(f'buffer_load_dwordx4 v{vX0}, s[12:15], s{sT0} offen offset:{1024 * i} lds')
    a(f'''
    v_lshlrev_b32 v{vX3}, 10, v{vX2}
    v_lshl_add_u32 v{vX3}, v{vX1}, 2, v{vX3}
    s_lshr_b32 s3, s{sW}, 1
    s_lshl_b32 s{sT0}, s3, 13
    s_and_b32 s{sT2}, s{sW}, 1
    s_lshl_b32 s{sT1}, s{sT2}, 7
    s_add_u32 s{sT0}, s{sT0}, s{sT1}
    s_add_u32 s{sT1}, s{sT0}, 4096
    ''')
    for r in range(16):
        jj, ii = r >> 2, r & 3
        a(f'buffer_load_dword v{HR + r}, v{vX3}, s[16:19], s{sT0 if jj < 2 else sT1} offen offset:{(jj & 1) * 2048 + ii * 256}')
    a(f'''
    s_lshl_b32 s3, s3, 5
    v_add_u32 v{vX1}, s3, v{vX1}
    v_mul_u32_u24 v{vX1}, {RS}, v{vX1}
    v_lshl_add_u32 v{vX1}, v{vX2}, 5, v{vX1}
    s_lshl_b32 s{sT2}, s{sT2}, 14
    s_add_u32 s{sT2}, s{sT2}, {SBUF}
    v_add_u32 v{vX0}, s{sT2}, v{vX0}
    s_mov_b32 s{sC0}, {NLN2:#x}
    s_mov_b32 s{sC0 + 1}, {NLN2:#x}
    ''')


def epi_step(a, s, wait, MB, WF):
    a(f's_waitcnt lgkmcnt({wait})')
    for x in range(4):
        a(f'v_cvt_pk_bf16_f32 v{MB + 4 * s + x}, v{8 * s + 2 * x}, v{8 * s + 2 * x + 1}')
    a('s_nop 1')
    a(mfma(CC, MB + 4 * s, WF + 8 * s))
    a(mfma(CC + 16, MB + 4 * s, WF + 8 * s + 4))


def stage1(a):
    t = EE
    a(f'''
    v_and_b32 v{t}, 0xffff, v{REC}
    v_bfe_u32 v{t + 1}, v{REC}, 16, 7
    v_mul_u32_u24 v{t}, 6, v{t}
    v_lshlrev_b32 v{t + 1}, 4, v{t + 1}
    v_and_b32 v{t}, -4, v{t}
    v_add_u32 v{t + 1}, {PD}, v{t + 1}
    buffer_load_dwordx2 {vr(POSQ, 2)}, v{t}, s[8:11], 0 offen
    ds_read_b128 {vr(PD4, 4)}, v{t + 1}
    ''')


def stage2(a):
    t = EE
    a(f'''
    v_lshlrev_b32 v{t}, 4, v{REC}
    v_cmp_lt_i32 s[{sVal}:{sVal + 1}], -1, v{REC}
    v_alignbit_b32 v{t + 1}, v{POSQ + 1}, v{POSQ}, v{t}
    v_lshrrev_b32 v{t + 2}, v{t}, v{POSQ + 1}
    v_lshlrev_b32 v{t + 3}, 16, v{t + 1}
    v_and_b32 v{t + 4}, 0xffff0000, v{t + 1}
    v_lshlrev_b32 v{t + 5}, 16, v{t + 2}
    v_sub_f32 v{t + 3}, v{PD4}, v{t + 3}
    v_sub_f32 v{t + 4}, v{PD4 + 1}, v{t + 4}
    v_sub_f32 v{t + 5}, v{PD4 + 2}, v{t + 5}
    v_cvt_pk_bf16_f32 v{SN}, 1.0, v{t + 3}
    v_cvt_pk_bf16_f32 v{SN + 1}, v{t + 4}, v{t + 5}
    v_bfe_u32 v{t + 6}, v{REC}, 16, 7
    v_bfe_u32 v{t + 7}, v{REC}, 16, 3
    v_and_b32 v{t + 3}, 0xffff0000, v{SN}
    v_lshlrev_b32 v{t + 4}, 16, v{SN + 1}
    v_and_b32 v{t + 5}, 0xffff0000, v{SN + 1}
    v_mul_f32 v{t + 3}, v{t + 3}, v{t + 3}
    v_mul_f32 v{t + 4}, v{t + 4}, v{t + 4}
    v_mul_f32 v{t + 5}, v{t + 5}, v{t + 5}
    v_mul_u32_u24 v{PD4 + 3}, {RS}, v{t + 6}
    v_lshl_add_u32 v{SAn}, v{t + 7}, 3, v{vSw}
    v_cvt_pk_bf16_f32 v{t + 3}, v{t + 3}, v{t + 4}
    v_cvt_pk_bf16_f32 v{t + 5}, 0, v{t + 5}
    v_lshlrev_b32 v{t + 4}, 16, v{t + 3}
    v_and_b32 v{t + 3}, 0xffff0000, v{t + 3}
    v_add_f32 v{t + 3}, v{t + 4}, v{t + 3}
    v_add_f32 v{t + 3}, v{t + 3}, v{t + 5}
    v_cvt_pk_bf16_f32 v{PRn}, v{t + 3}, v{REC + 1}
    ''')


def stage_w_aoff(a):
    a(f'ds_write_b32 v{vStg}, v{PD4 + 3} offset:256')


def stage_w_pair(a):
    a(f'ds_write_b32 v{vStg}, v{PRn}')


def stage_w_s(a):
    a(f'''
    ds_write_b64 v{SAo}, {vr(ZZ, 2)}
    s_mov_b64 exec, s[{sVal}:{sVal + 1}]
    ds_write_b64 v{SAn}, {vr(SN, 2)}
    s_mov_b64 exec, -1
    ''')


def slot(a, tau):
    cur, nxt = (D0, D1) if tau % 2 == 0 else (D1, D0)
    even = tau % 2 == 0
    exps = [f'v_exp_f32 v{EE + r}, v{cur + r}' for r in range(16)]
    rcps = [f'v_rcp_f32 v{EE + r}, v{EE + r}' for r in range(16)]
    g = GG + 8 * (tau % 4)
    gn = GG + 8 * ((tau + 1) % 4)
    t1 = (tau + 1) % 8
    t2 = (tau + 2) % 8
    for jj in range(4):
        a(f'ds_read_b128 {vr(nxt + 4 * jj, 4)}, v{AD + jj}')
    k = 0
    if even:
        for c in range(4):
            a(mfma(ACC + 16 * c, SF, MM + 4 * c))
            if c == 0:
                a(f's_add_u32 s3, s{sBeta}, 2')
                a(f's_cmp_lt_u32 s3, s{sEnd}')
                a(f's_cselect_b32 s6, {N}, 0')
            for x in range(3):
                a(exps[k]); k += 1
    else:
        for x in range(2):
            a(exps[k]); k += 1
    a(f'''
    ds_read_b128 {vr(AD, 4)}, v{vLaoff} offset:{32 * t2}
    s_mov_b64 exec, s[{sM0}:{sM0 + 1}]
    ds_read2_b32 {vr(PP, 2)}, v{vLpair} offset0:{8 * t1} offset1:{8 * t1}
    s_mov_b64 exec, s[{sM1}:{sM1 + 1}]
    ds_read2_b32 {vr(PP + 2, 2)}, v{vLpair} offset0:{8 * t1} offset1:{8 * t1}
    s_mov_b64 exec, -1
    ''')
    if tau == 6:
        stage_w_pair(a)
    a(exps[k]); k += 1
    if tau == 1:
        a(f'buffer_load_dwordx2 {vr(POSQ, 2)}, v{SAn}, s[8:11], 0 offen')
        a(f'ds_read_b128 {vr(PD4, 4)}, v{PRn}')
    a(f'buffer_load_dwordx4 {vr(g, 4)}, {vr(IDX, 2)}, s[4:7], 0 idxen offen')
    a(exps[k]); k += 1
    a(f'buffer_load_dwordx4 {vr(g + 4, 4)}, {vr(IDX, 2)}, s[4:7], 0 idxen offen offset:128')
    a(f'ds_read_u16 v{IDX}, v{vLidx} offset:{64 * (tau + 5)}')
    if tau == 0:
        a(f'ds_read_b64 {vr(REC, 2)}, v{vLrec} offset:512')
    if not even:
        b = tau // 2
        a(f'ds_read_b64_tr_b16 {vr(SF, 2)}, v{vSr} offset:{1024 * b}')
        a(f'ds_read_b64_tr_b16 {vr(SF + 2, 2)}, v{vSr} offset:{1024 * b + 512}')
        if tau == 7:
            stage_w_s(a)
    while k < 16:
        a(exps[k]); k += 1
    for r in range(0, 16, 2):
        a(f'v_pk_add_f32 {vr(EE + r, 2)}, {vr(EE + r, 2)}, 1.0 op_sel_hi:[1,0]')
    a(f's_waitcnt vmcnt({7 if tau in (1, 2, 3) else 6}) lgkmcnt(0)')
    ms = [mfma(nxt, PP, QQ), mfma(nxt, gn, I0), mfma(nxt, gn + 4, I1)]
    k = 0
    for m in ms:
        a(m)
        for x in range(3):
            a(rcps[k]); k += 1
    while k < 16:
        a(rcps[k]); k += 1
    a(f'''
    v_lshl_add_u64 {vr(AD, 2)}, {vr(AD, 2)}, 0, {vr(AB, 2)}
    v_lshl_add_u64 {vr(AD + 2, 2)}, {vr(AD + 2, 2)}, 0, {vr(AB, 2)}
    ''')
    for r in range(0, 16, 2):
        a(f'v_pk_mul_f32 {vr(EE + r, 2)}, {vr(EE + r, 2)}, {vr(cur + r, 2)}')
    o = 0 if even else 2
    for c in range(4):
        a(f'v_cvt_pk_bf16_f32 v{MM + 4 * c + o}, v{EE + c}, v{EE + 4 + c}')
        a(f'v_cvt_pk_bf16_f32 v{MM + 4 * c + o + 1}, v{EE + 8 + c}, v{EE + 12 + c}')
    if tau == 0:
        a(f'''
        v_mov_b32 v{SAo}, v{SAn}
        v_and_b32 v{SAn}, 0xffff, v{REC}
        v_bfe_u32 v{PRn}, v{REC}, 16, 7
        v_mul_u32_u24 v{SAn}, 6, v{SAn}
        v_lshlrev_b32 v{PRn}, 4, v{PRn}
        v_and_b32 v{SAn}, -4, v{SAn}
        v_add_u32 v{PRn}, {PD}, v{PRn}
        ''')
    if tau == 5:
        stage2(a)
        stage_w_aoff(a)
    if tau == 7:
        a(f'v_add_u32 v{vLidx}, 512, v{vLidx}')
        a(f'v_add_u32 v{vLrec}, 512, v{vLrec}')
    if even:
        a(f'''
        s_cmp_eq_u32 s{sBeta}, s{sGend}
        s_cbranch_scc0 K2_NF{tau}
        s_call_b64 s[{sRet}:{sRet + 1}], K2_FLUSH
        K2_NF{tau}:
        ''')
    else:
        a(f'''
        s_add_u32 s{sBeta}, s{sBeta}, 1
        s_cmp_lt_u32 s{sBeta}, s{sEnd}
        s_cbranch_scc0 K2_DRAIN
        ''')


def flush(a):
    t = EE
    A = lambda c, jj, ii: ACC + 16 * c + 4 * jj + ii
    V1 = lambda jj: t + jj
    V23 = lambda jj: t + 4 + 2 * jj
    V = lambda jj, k: V1(jj) if k == 0 else V23(jj) + k - 1
    aM, aP, Y, Z = t + 12, t + 13, t + 14, t + 15
    a('K2_FLUSH:')
    a(f'''
    s_mul_i32 s3, s{sG}, {8 * RS}
    v_add_u32 v{aM}, s3, v{vFl}
    s_lshl_b32 s3, s{sG}, 7
    v_add_u32 v{aP}, s3, v{vFp}
    s_mov_b32 s{sGp}, s{sG}
    ''')
    for c in range(4):
        for jj in range(4):
            if c == 0:
                a(f'v_mul_f32 v{V1(jj)}, v{WX}, v{A(c, jj, 1)}')
            else:
                a(f'v_fmac_f32 v{V1(jj)}, v{WX + c}, v{A(c, jj, 1)}')
        wp = vr(WX + (c & ~1), 2)
        s = c & 1
        for jj in range(4):
            if c == 0:
                a(f'v_pk_mul_f32 {vr(V23(jj), 2)}, {vr(A(c, jj, 2), 2)}, {wp} op_sel:[0,{s}] op_sel_hi:[1,{s}]')
            else:
                a(f'v_pk_fma_f32 {vr(V23(jj), 2)}, {vr(A(c, jj, 2), 2)}, {wp}, {vr(V23(jj), 2)} op_sel:[0,{s},0] op_sel_hi:[1,{s},1]')
    a(f'v_cmp_ge_u32 vcc, s{sBeta}, v{vGend}')
    for p in range(2):
        for k in range(3):
            a(f'v_permlane16_swap_b32 v{V(2 * p, k)}, v{V(2 * p + 1, k)}')
    a(f'''
    s_and_b32 vcc_lo, vcc_lo, 0x1fff
    s_bcnt1_i32_b32 s{sG}, vcc_lo
    ''')
    for p in range(2):
        for k in range(3):
            a(f'v_add_f32 v{V(2 * p, k)}, v{V(2 * p, k)}, v{V(2 * p + 1, k)}')
    a(f'v_readlane_b32 s{sGend}, v{vGend}, s{sG}')
    for k in range(3):
        a(f'v_add_f32_dpp v{V(1, k)}, v{V(0, k)}, v{V(0, k)} row_ror:8 row_mask:0xf bank_mask:0x3')
    for k in range(3):
        a(f'v_add_f32_dpp v{V(1, k)}, v{V(2, k)}, v{V(2, k)} row_ror:8 row_mask:0xf bank_mask:0xc')
    a(f'''
    v_add_f32_dpp v{Y}, v{V(1, 0)}, v{V(1, 0)} row_half_mirror row_mask:0xf bank_mask:0x5
    s_nop 0
    v_add_f32_dpp v{Z}, v{V(1, 2)}, v{V(1, 2)} row_half_mirror row_mask:0xf bank_mask:0xf
    v_add_f32_dpp v{Y}, v{V(1, 1)}, v{V(1, 1)} row_half_mirror row_mask:0xf bank_mask:0xa
    s_cmp_eq_u32 s{sFm}, 2
    v_add_f32_dpp v{Z}, v{Z}, v{Z} quad_perm:[1,0,3,2] row_mask:0xf bank_mask:0xf
    v_add_f32_dpp v{Y}, v{Y}, v{Y} quad_perm:[1,0,3,2] row_mask:0xf bank_mask:0xf
    s_nop 0
    v_add_f32_dpp v{Z}, v{Z}, v{Z} quad_perm:[2,3,0,1] row_mask:0xf bank_mask:0xf
    v_add_f32_dpp v{Y}, v{Y}, v{Y} quad_perm:[2,3,0,1] row_mask:0xf bank_mask:0xf
    s_cbranch_scc1 K2_FLRET
    s_cmp_eq_u32 s{sFm}, 0
    s_cbranch_scc1 K2_FLW
    K2_FLUSH2:
    ds_read_b32 v{t + 8}, v{aP}
    ds_read_b32 v{t + 9}, v{aP} offset:8
    ''')
    for hf in range(2):
        for jj in (2 * hf, 2 * hf + 1):
            for c in range(4):
                a(f'ds_read_b32 v{t + 4 * (jj & 1) + c}, v{aM} offset:{128 * c + 2 * RS * jj}')
        a('s_waitcnt lgkmcnt(0)')
        for jj in (2 * hf, 2 * hf + 1):
            for c in range(4):
                a(f'v_add_f32 v{A(c, jj, 0)}, v{A(c, jj, 0)}, v{t + 4 * (jj & 1) + c}')
    a(f'''
    v_add_f32 v{Y}, v{Y}, v{t + 8}
    v_add_f32 v{Z}, v{Z}, v{t + 9}
    K2_FLW:
    v_mov_b64 {vr(t + 8, 2)}, 0
    v_mov_b64 {vr(t + 10, 2)}, 0
    ds_write_b32 v{aP}, v{Y}
    ds_write_b32 v{aP}, v{Z} offset:8
    ''')
    for c in range(4):
        a(f'ds_write_b32 v{aM}, v{A(c, 0, 0)} offset:{128 * c}')
    a(f'''
    s_cmp_eq_u32 s{sGp}, 12
    s_cbranch_scc1 K2_FL1
    ''')
    for jj in range(1, 4):
        for c in range(4):
            a(f'ds_write_b32 v{aM}, v{A(c, jj, 0)} offset:{128 * c + 2 * RS * jj}')
    a('K2_FL1:')
    a(f's_cmp_eq_u32 s{sFm}, 2')
    a('s_waitcnt lgkmcnt(0)')
    a('s_cbranch_scc1 K2_FLRET')
    for c in range(4):
        a(mfma(ACC + 16 * c, t + 8, t + 8, '0'))
    a('K2_FLRET:')
    a(f's_setpc_b64 s[{sRet}:{sRet + 1}]')


def zero_acc(a):
    nz = (SPARE - MACC) // 16
    a(f'''
    v_mov_b64 v[32:33], 0
    v_mov_b64 v[34:35], 0
    v_lshlrev_b32 v36, 4, v{vT}
    v_add_u32 v36, {MACC}, v36
    ''')
    for i in range(nz // 512):
        a(f'ds_write_b128 v36, v[32:35] offset:{8192 * i}')
    a(f'''
    s_movk_i32 s3, {nz % 512}
    v_cmp_gt_u32 vcc, s3, v{vT}
    s_and_saveexec_b64 s[{sT0}:{sT0 + 1}], vcc
    ds_write_b128 v36, v[32:35] offset:{8192 * (nz // 512)}
    s_mov_b64 exec, -1
    ''')


def kd(name, vgpr, sgpr):
    return f'''.section .rodata,"a"
.p2align 6
.amdhsa_kernel {name}
  .amdhsa_next_free_vgpr {vgpr}
  .amdhsa_next_free_sgpr {sgpr}
  .amdhsa_accum_offset {(vgpr + 3) // 4 * 4}
  .amdhsa_group_segment_fixed_size 0
  .amdhsa_kernarg_size 88
  .amdhsa_user_sgpr_count 2
  .amdhsa_user_sgpr_kernarg_segment_ptr 1
  .amdhsa_system_sgpr_workgroup_id_x 1
  .amdhsa_float_denorm_mode_32 3
.end_amdhsa_kernel
'''


HEADER = f'''; EGNN layer: K1 bins the edges by destination bucket and builds B = h @ W2; K2 does the edge MLP,
; @launch kernel=egnn_k1_kernel grid=({K1_GRID},1,1) block=(512,1,1) lds=65536
; @launch kernel=egnn_k2_kernel grid=(256,1,1) block=(512,1,1) lds={LDS_TOTAL}
.amdgcn_target "amdgcn-amd-amdhsa--gfx950"
.text
'''


def build(**opt):
    OPT.update(opt)
    a = Asm()
    gen_k1(a)
    gen_k2(a)
    return HEADER + a.text() + kd('egnn_k1_kernel', 104, 64) + kd('egnn_k2_kernel', 256, 96)


if __name__ == '__main__':
    out = sys.argv[1] if len(sys.argv) > 1 else 'gather_scatter__cheap_equivariant_egnn__graph.s'
    opt = {}
    for x in sys.argv[2:]:
        k, v = x.split('=', 1)
        opt[k] = {'True': True, 'False': False}.get(v, v)
    open(out, 'w').write(build(**opt))
```

```python
import sys

N = 25000
E = 400000
NB = 98
NCH = 128
CH = 3128
CHB = CH * 8
WS_B = 0
WS_REC = 0x640000
WS_OFF = 0x960000
WS_W = 0x990000
WS_END = WS_W + 3 * 32768 + 4096
NLOG2E = 0xBFB8AA3B
NLN2 = 0xBF317218

OPT = dict(stamps=False, st_k1='sc1', st_out='', )


class Asm:
    def __init__(self):
        self.l = []

    def __call__(self, s):
        for x in s.split('\n'):
            x = x.strip()
            if x:
                self.l.append(x)

    def text(self):
        return '\n'.join((x if x.endswith(':') or x.startswith('.') else '    ' + x) for x in self.l) + '\n'


def vr(a, n):
    return f'v[{a}:{a + n - 1}]' if n > 1 else f'v{a}'


def sr(a, n):
    return f's[{a}:{a + n - 1}]' if n > 1 else f's{a}'


def srd(a, d, base, off, nrec, stride=0):
    if off == 0:
        a(f's_mov_b32 s{d}, s{base}')
        if stride:
            a(f's_or_b32 s{d + 1}, s{base + 1}, {stride << 16:#x}')
        else:
            a(f's_mov_b32 s{d + 1}, s{base + 1}')
    else:
        a(f's_add_u32 s{d}, s{base}, {off}')
        a(f's_addc_u32 s{d + 1}, s{base + 1}, 0')
        assert not stride
    a(f's_mov_b32 s{d + 2}, {nrec}')
    a(f's_mov_b32 s{d + 3}, 0x20000')


def mfma(d, A, B, C=None):
    c = vr(d, 16) if C is None else C
    return f'v_mfma_f32_32x32x16_bf16 {vr(d, 16)}, {vr(A, 4)}, {vr(B, 4)}, {c}'


K1_BIN, K1_GEMM, K1_PREP = NCH, 196, 13
K1_GRID = K1_BIN + K1_GEMM + K1_PREP


def k1stamp(a, k):
    if OPT['stamps']:
        a('s_memtime s[58:59]')
        a('s_waitcnt lgkmcnt(0)')
        a('s_sub_u32 s58, s58, s62')
        a(f'v_writelane_b32 v104, s58, {k}')


def k1end(a):
    if OPT['stamps']:
        k1stamp(a, 14)
        a('s_waitcnt vmcnt(0)')
        k1stamp(a, 15)
        a(f'''
        s_memrealtime s[58:59]
        s_waitcnt lgkmcnt(0)
        v_writelane_b32 v104, s60, 0
        v_writelane_b32 v104, s58, 1
        s_lshl_b32 s3, s2, 6
        s_add_u32 s3, s3, {0x1100000}
        ''')
        srd(a, 4, 52, 's3', 64)
        a('''
        v_mbcnt_lo_u32_b32 v0, -1, 0
        v_mbcnt_hi_u32_b32 v0, -1, v0
        v_lshlrev_b32 v0, 2, v0
        buffer_store_dword v104, v0, s[4:7], 0 offen
        ''')
    a('s_endpgm')


def gen_k1(a):
    st = OPT['st_k1']
    a('.p2align 8')
    a('.globl egnn_k1_kernel')
    a('.type egnn_k1_kernel,@function')
    a('egnn_k1_kernel:')
    if OPT['stamps']:
        a('s_memrealtime s[60:61]')
        a('s_memtime s[62:63]')
        a('v_mov_b32 v104, 0')
    a(f'''
    s_load_dwordx16 s[36:51], s[0:1], 0
    s_load_dwordx2 s[52:53], s[0:1], 80
    s_cmp_lt_u32 s2, {K1_BIN}
    s_cbranch_scc1 K1_BIN
    s_cmp_lt_u32 s2, {K1_BIN + K1_GEMM}
    s_cbranch_scc1 K1_GEMM
    s_cmp_lt_u32 s2, {K1_GRID - 1}
    s_cbranch_scc1 K1_PREP
    s_cmp_lt_u32 s2, {K1_GRID}
    s_cbranch_scc1 K1_CONST
    s_endpgm
    ''')
    HIST, BASE, SORTED = 0, 1024, 2048
    a('K1_BIN:')
    a(f'''
    v_lshlrev_b32 v1, 2, v0
    v_mov_b32 v2, 0
    s_mul_i32 s3, s2, {CH}
    v_add_u32 v3, s3, v1
    v_add_u32 v4, {391 * 4}, v3
    v_cmp_gt_u32 vcc, 256, v0
    s_and_saveexec_b64 s[20:21], vcc
    ds_write_b32 v1, v2 offset:{HIST}
    s_mov_b64 exec, s[20:21]
    s_mov_b32 s22, {E}
    v_cmp_gt_u32 s[24:25], s22, v3
    v_cmp_gt_u32 s[26:27], s22, v4
    v_cmp_gt_u32 vcc, 391, v0
    v_mov_b32 v5, 0x7fffff00
    s_and_b64 s[24:25], s[24:25], vcc
    s_and_b64 s[26:27], s[26:27], vcc
    v_lshlrev_b32 v6, 2, v3
    v_lshlrev_b32 v7, 2, v4
    v_lshlrev_b32 v8, 1, v3
    v_lshlrev_b32 v9, 1, v4
    v_cndmask_b32_e64 v6, v5, v6, s[24:25]
    v_cndmask_b32_e64 v7, v5, v7, s[26:27]
    v_cndmask_b32_e64 v8, v5, v8, s[24:25]
    v_cndmask_b32_e64 v9, v5, v9, s[26:27]
    s_waitcnt lgkmcnt(0)
    ''')
    srd(a, 4, 44, 0, E * 4)
    srd(a, 8, 42, 0, E * 4)
    srd(a, 12, 40, 0, E * 2)
    DST, SRC, EA, BK, RK, RC = 12, 20, 28, 32, 40, 48
    a(f'''
    buffer_load_dwordx4 {vr(DST, 4)}, v6, s[4:7], 0 offen
    buffer_load_dwordx4 {vr(DST + 4, 4)}, v7, s[4:7], 0 offen
    buffer_load_dwordx4 {vr(SRC, 4)}, v6, s[8:11], 0 offen
    buffer_load_dwordx4 {vr(SRC + 4, 4)}, v7, s[8:11], 0 offen
    buffer_load_dwordx2 {vr(EA, 2)}, v8, s[12:15], 0 offen
    buffer_load_dwordx2 {vr(EA + 2, 2)}, v9, s[12:15], 0 offen
    s_mul_i32 s3, s2, {CHB}
    s_add_u32 s3, s3, {WS_REC}
    ''')
    srd(a, 16, 52, 's3', CHB)
    a(f'''
    s_lshl_b32 s3, s2, 10
    s_add_u32 s3, s3, {WS_OFF}
    ''')
    srd(a, 28, 52, 's3', 1024)
    a(f'''
    s_movk_i32 s22, 21400
    s_movk_i32 s23, -98
    v_mov_b32 v10, 1
    s_barrier
    ''')
    k1stamp(a, 2)
    a('s_waitcnt vmcnt(4)')
    k1stamp(a, 3)
    for i in range(8):
        a(f'v_mul_u32_u24 v{BK + i}, s22, v{DST + i}')
    for i in range(8):
        a(f'v_lshrrev_b32 v{BK + i}, 21, v{BK + i}')
    for i in range(8):
        a(f'v_mad_i32_i24 v{DST + i}, v{BK + i}, s23, v{DST + i}')
    for i in range(8):
        a(f'v_lshlrev_b32 v{BK + i}, 2, v{BK + i}')
    for g in range(2):
        a(f's_mov_b64 exec, s[{24 + 2 * g}:{25 + 2 * g}]')
        for i in range(4 * g, 4 * g + 4):
            a(f'ds_add_rtn_u32 v{RK + i}, v{BK + i}, v10 offset:{HIST}')
    a('s_mov_b64 exec, -1')
    a('s_waitcnt vmcnt(0)')
    for i in range(8):
        a(f'v_lshl_or_b32 v{RC + 2 * i}, v{DST + i}, 16, v{SRC + i}')
        if i & 1:
            a(f'v_and_b32 v{RC + 2 * i + 1}, 0xffff0000, v{EA + i // 2}')
        else:
            a(f'v_lshlrev_b32 v{RC + 2 * i + 1}, 16, v{EA + i // 2}')
    a(f'''
    v_and_b32 v1, 63, v0
    v_lshlrev_b32 v1, 4, v1
    s_waitcnt lgkmcnt(0)
    s_barrier
    ''')
    k1stamp(a, 4)
    a(f'''
    ds_read_b128 v[4:7], v1 offset:{HIST}
    s_waitcnt lgkmcnt(0)
    v_add_u32 v12, v4, v5
    v_add3_u32 v14, v12, v6, v7
    v_add_u32 v13, v12, v6
    v_mov_b32 v15, v14
    s_nop 1
    v_add_u32_dpp v15, v15, v15 row_shr:1 row_mask:0xf bank_mask:0xf
    s_nop 1
    v_add_u32_dpp v15, v15, v15 row_shr:2 row_mask:0xf bank_mask:0xf
    s_nop 1
    v_add_u32_dpp v15, v15, v15 row_shr:4 row_mask:0xf bank_mask:0xf
    s_nop 1
    v_add_u32_dpp v15, v15, v15 row_shr:8 row_mask:0xf bank_mask:0xf
    s_nop 1
    v_add_u32_dpp v15, v15, v15 row_bcast:15 row_mask:0xa bank_mask:0xf
    s_nop 1
    v_add_u32_dpp v15, v15, v15 row_bcast:31 row_mask:0xc bank_mask:0xf
    v_sub_u32 v16, v15, v14
    v_add_u32 v17, v16, v4
    v_add_u32 v18, v16, v12
    v_add_u32 v19, v16, v13
    ds_write_b128 v1, v[16:19] offset:{BASE}
    ''')
    for i in range(8):
        a(f'ds_read_b32 v{20 + i}, v{BK + i} offset:{BASE}')
    a(f'''
    v_lshl_or_b32 v16, v4, 16, v16
    v_lshl_or_b32 v17, v5, 16, v17
    v_lshl_or_b32 v18, v6, 16, v18
    v_lshl_or_b32 v19, v7, 16, v19
    v_lshlrev_b32 v1, 4, v0
    buffer_store_dwordx4 v[16:19], v1, s[28:31], 0 offen {st}
    s_waitcnt lgkmcnt(0)
    ''')
    for i in range(8):
        a(f'v_add_lshl_u32 v{20 + i}, v{20 + i}, v{RK + i}, 3')
    for g in range(2):
        a(f's_mov_b64 exec, s[{24 + 2 * g}:{25 + 2 * g}]')
        for i in range(4 * g, 4 * g + 4):
            a(f'ds_write_b64 v{20 + i}, {vr(RC + 2 * i, 2)} offset:{SORTED}')
    a(f'''
    s_mov_b64 exec, -1
    s_movk_i32 s20, 8192
    s_movk_i32 s21, 16384
    s_movk_i32 s22, 24576
    s_waitcnt lgkmcnt(0)
    s_barrier
    ''')
    k1stamp(a, 5)
    for i in range(4):
        a(f'ds_read_b128 {vr(4 + 4 * i, 4)}, v1 offset:{SORTED + 8192 * i}')
    for i in range(4):
        a(f's_waitcnt lgkmcnt({3 - i})')
        a(f'buffer_store_dwordx4 {vr(4 + 4 * i, 4)}, v1, s[16:19], {["0", "s20", "s21", "s22"][i]} offen {st}')
    k1end(a)

    HT, WT = 0, 32768
    a('K1_GEMM:')
    a(f'''
    v_lshrrev_b32 v1, 6, v0
    v_and_b32 v0, 63, v0
    v_readfirstlane_b32 s24, v1                 ; wave
    s_sub_u32 s3, s2, {K1_BIN}
    s_lshl_b32 s20, s3, 15
    s_sub_u32 s21, {N * 256}, s20
    s_min_u32 s21, s21, 32768
    v_lshrrev_b32 v2, 4, v0
    v_and_b32 v3, 15, v0                        ; slot
    s_and_b32 s25, s24, 3
    s_lshl_b32 s25, s25, 2
    v_add_u32 v4, s25, v2                       ; row & 15
    v_xor_b32 v4, v4, v3
    v_lshlrev_b32 v4, 4, v4
    v_lshl_add_u32 v4, v2, 8, v4
    v_lshlrev_b32 v5, 2, v2
    v_xor_b32 v5, v5, v3
    v_lshlrev_b32 v5, 4, v5
    v_lshl_add_u32 v5, v2, 8, v5
    s_lshl_b32 s26, s24, 10
    s_waitcnt lgkmcnt(0)
    ''')
    srd(a, 4, 36, 's20', 's21')
    srd(a, 8, 46, 128 * 256, 32768)
    srd(a, 12, 52, 's20', 's21')
    for i in range(4):
        a(f'''
        s_add_u32 s27, s26, {8192 * i}
        s_add_u32 m0, s26, {HT + 8192 * i}
        s_add_u32 s28, s26, {WT + 8192 * i}
        buffer_load_dwordx4 v4, s[4:7], s27 offen lds
        s_mov_b32 m0, s28
        s_nop 0
        buffer_load_dwordx4 v5, s[8:11], s27 offen lds
        ''')
    a(f'''
    s_lshr_b32 s29, s24, 1                      ; nt
    s_and_b32 s30, s24, 1                       ; ch
    v_and_b32 v6, 31, v0                        ; i
    v_lshrrev_b32 v7, 5, v0                     ; h
    v_xor_b32 v8, v7, v3                        ; h ^ (i&15)
    v_lshlrev_b32 v8, 4, v8
    v_lshl_add_u32 v8, v6, 8, v8
    s_lshl_b32 s31, s29, 13
    v_add_u32 v8, s31, v8
    v_lshrrev_b32 v9, 2, v3                     ; r
    v_lshl_add_u32 v10, v7, 3, v9               ; 8h + r
    v_lshlrev_b32 v10, 8, v10
    v_and_b32 v11, 1, v2                        ; gq&1
    v_lshl_add_u32 v10, v11, 5, v10
    v_and_b32 v11, 3, v0                        ; cc
    v_lshl_add_u32 v10, v11, 3, v10
    s_lshl_b32 s31, s30, 1
    v_xor_b32 v11, s31, v9                      ; ct0 ^ r
    v_lshl_add_u32 v12, v11, 6, v10
    v_xor_b32 v13, 64, v12
    ''')
    for s in range(1, 8):
        a(f'v_xor_b32 v{16 + s}, {32 * s}, v8')
    a(f'''
    v_lshlrev_b32 v14, 10, v7
    v_lshl_add_u32 v14, v6, 2, v14
    s_lshl_b32 s31, s29, 13
    s_lshl_b32 s33, s30, 7
    s_add_u32 s31, s31, s33
    s_add_u32 s32, s31, 4096
    s_mov_b32 s34, {NLOG2E:#x}
    s_mov_b32 s35, {NLOG2E:#x}
    ''')
    k1stamp(a, 2)
    a('s_waitcnt vmcnt(0)')
    k1stamp(a, 3)
    a('s_barrier')
    k1stamp(a, 4)
    H, W0, W1, D0, D1 = 24, 40, 56, 72, 88
    for s in range(8):
        q = 4 * (s & 3)
        a(f'ds_read_b128 {vr(H + q, 4)}, v{8 if s == 0 else 16 + s} offset:{HT}')
        for rr in range(2):
            a(f'ds_read_b64_tr_b16 {vr(W0 + q + 2 * rr, 2)}, v12 offset:{WT + 4096 * s + 1024 * rr}')
        for rr in range(2):
            a(f'ds_read_b64_tr_b16 {vr(W1 + q + 2 * rr, 2)}, v13 offset:{WT + 4096 * s + 1024 * rr}')
        if s >= 2:
            k = s - 2
            q = 4 * (k & 3)
            a('s_waitcnt lgkmcnt(10)')
            a(mfma(D0, H + q, W0 + q, '0' if k == 0 else None))
            a(mfma(D1, H + q, W1 + q, '0' if k == 0 else None))
    for k in (6, 7):
        q = 4 * (k & 3)
        a(f's_waitcnt lgkmcnt({5 * (7 - k)})')
        a(mfma(D0, H + q, W0 + q))
        a(mfma(D1, H + q, W1 + q))
    a('s_nop 10')
    k1stamp(a, 5)
    for r in range(0, 16, 2):
        a(f'v_pk_mul_f32 {vr(D0 + r, 2)}, {vr(D0 + r, 2)}, s[34:35]')
    for r in range(0, 16, 2):
        a(f'v_pk_mul_f32 {vr(D1 + r, 2)}, {vr(D1 + r, 2)}, s[34:35]')
    for r in range(16):
        a(f'v_cvt_pk_bf16_f32 v{24 + r}, v{D0 + r}, v{D1 + r}')
        jj, ii = r >> 2, r & 3
        a(f'buffer_store_dword v{24 + r}, v14, s[12:15], {"s31" if jj < 2 else "s32"} offen offset:{(jj & 1) * 2048 + ii * 256} {st}')
    k1end(a)

    a('K1_PREP:')
    a(f'''
    s_sub_u32 s3, s2, {K1_BIN + K1_GEMM}
    s_lshr_b32 s20, s3, 2                       ; matrix
    s_and_b32 s21, s3, 3                        ; tile
    v_lshrrev_b32 v1, 6, v0                     ; s
    v_and_b32 v2, 31, v0                        ; i
    v_bfe_u32 v3, v0, 5, 1                      ; h
    ; column
    s_lshr_b32 s22, s21, 1
    s_lshl_b32 s22, s22, 6
    s_and_b32 s23, s21, 1
    s_cmp_eq_u32 s20, 0
    s_cbranch_scc0 K1_PREP_C1
    s_lshl_b32 s23, s23, 4
    v_bfe_u32 v4, v2, 2, 1
    v_lshlrev_b32 v4, 5, v4
    v_and_b32 v5, 3, v2
    v_lshl_add_u32 v4, v5, 2, v4
    v_lshrrev_b32 v5, 3, v2
    v_add_u32 v4, v4, v5
    s_branch K1_PREP_C2
    K1_PREP_C1:
    v_lshlrev_b32 v4, 1, v2
    K1_PREP_C2:
    s_add_u32 s22, s22, s23
    v_add_u32 v4, s22, v4                       ; column
    v_lshlrev_b32 v5, 4, v1
    v_lshl_add_u32 v5, v3, 3, v5                ; 16s+8h
    s_movk_i32 s24, 256
    s_movk_i32 s25, 512
    s_cmp_eq_u32 s20, 2
    s_cbranch_scc0 K1_PREP_R
    v_and_b32 v5, 1, v1
    v_lshlrev_b32 v5, 6, v5
    v_lshl_add_u32 v5, v3, 4, v5
    v_lshrrev_b32 v6, 1, v1
    v_lshl_add_u32 v5, v6, 2, v5
    v_add_u32 v5, 128, v5
    s_movk_i32 s24, 8192
    s_movk_i32 s25, 256
    K1_PREP_R:
    v_lshlrev_b32 v5, 8, v5
    v_lshl_add_u32 v5, v4, 1, v5
    s_waitcnt lgkmcnt(0)
    s_cmp_eq_u32 s20, 0
    s_cselect_b32 s4, s46, s50
    s_cselect_b32 s5, s47, s51
    s_mov_b32 s6, 65540
    s_mov_b32 s7, 0x20000
    s_lshl_b32 s3, s3, 13
    s_add_u32 s3, s3, {WS_W}
    ''')
    srd(a, 8, 52, 's3', 8192)
    a('s_mov_b32 s26, 0')
    for x in range(4):
        a(f'''
        s_add_u32 s27, s26, s24
        buffer_load_ushort v{8 + x}, v5, s[4:7], s26 offen
        buffer_load_ushort v{12 + x}, v5, s[4:7], s27 offen
        s_add_u32 s26, s26, s25
        ''')
    a(f'''
    v_lshlrev_b32 v1, 4, v0
    s_waitcnt vmcnt(0)
    v_lshl_or_b32 v8, v12, 16, v8
    v_lshl_or_b32 v9, v13, 16, v9
    v_lshl_or_b32 v10, v14, 16, v10
    v_lshl_or_b32 v11, v15, 16, v11
    buffer_store_dwordx4 v[8:11], v1, s[8:11], 0 offen {st}
    ''')
    k1end(a)
    a('K1_CONST:')
    a(f'''
    v_readfirstlane_b32 s3, v0
    s_nop 3
    s_cmp_lt_u32 s3, 64
    s_cbranch_scc0 K1_END
    v_and_b32 v2, 31, v0                        ; j
    v_lshrrev_b32 v3, 5, v0                     ; h
    v_lshrrev_b32 v4, 4, v2
    v_lshlrev_b32 v4, 6, v4
    v_and_b32 v5, 1, v2
    v_lshl_add_u32 v4, v5, 5, v4
    v_bfe_u32 v5, v2, 3, 1
    v_lshl_add_u32 v4, v5, 4, v4
    v_bfe_u32 v5, v2, 1, 2
    v_add_u32 v4, v4, v5                        ; feature(0,j)
    v_lshlrev_b32 v4, 1, v4
    v_lshl_add_u32 v5, v3, 4, v4
    s_waitcnt lgkmcnt(0)
    ''')
    srd(a, 4, 46, 65536, 516)
    srd(a, 8, 48, 0, 260)
    srd(a, 12, 52, WS_W + 3 * 32768, 4096)
    a(f'''
    buffer_load_ushort v8, v5, s[4:7], 0 offen
    buffer_load_ushort v9, v5, s[4:7], 0 offen offset:256
    buffer_load_ushort v10, v5, s[4:7], 0 offen offset:8
    buffer_load_ushort v11, v5, s[4:7], 0 offen offset:264
    buffer_load_ushort v12, v4, s[8:11], 0 offen
    buffer_load_ushort v13, v4, s[8:11], 0 offen offset:8
    buffer_load_ushort v14, v4, s[8:11], 0 offen offset:16
    buffer_load_ushort v15, v4, s[8:11], 0 offen offset:24
    v_lshlrev_b32 v1, 4, v0
    v_lshlrev_b32 v6, 3, v3
    v_sub_u32 v6, v2, v6                        ; d = j - 8h
    v_and_b32 v7, 1, v2
    v_lshlrev_b32 v7, 4, v7
    v_mov_b32 v16, 0x3f80
    v_lshlrev_b32 v7, v7, v16
    v_ashrrev_i32 v6, 1, v6
    ''')
    for x in range(8):
        sel = x if x < 4 else x + 4
        a(f'''
        v_cmp_eq_u32 vcc, {sel}, v6
        s_nop 1
        v_cndmask_b32_e64 v{20 + x}, 0, v7, vcc
        ''')
    a(f'''
    buffer_store_dwordx4 v[20:23], v1, s[12:15], 0 offen {st}
    buffer_store_dwordx4 v[24:27], v1, s[12:15], 0 offen offset:1024 {st}
    s_mov_b32 s20, {NLOG2E:#x}
    s_mov_b32 s21, {NLN2:#x}
    s_waitcnt vmcnt(2)
    ''')
    for x in range(8):
        a(f'v_lshlrev_b32 v{8 + x}, 16, v{8 + x}')
    for x in range(4):
        a(f'v_mul_f32 v{8 + x}, s20, v{8 + x}')
        a(f'v_mul_f32 v{12 + x}, s21, v{12 + x}')
    a(f'''
    v_cvt_pk_bf16_f32 v28, v8, v9
    v_cvt_pk_bf16_f32 v30, v10, v11
    v_lshlrev_b32 v16, 16, v28
    v_and_b32 v17, 0xffff0000, v28
    v_lshlrev_b32 v18, 16, v30
    v_and_b32 v19, 0xffff0000, v30
    v_sub_f32 v8, v8, v16
    v_sub_f32 v9, v9, v17
    v_sub_f32 v10, v10, v18
    v_sub_f32 v11, v11, v19
    v_cvt_pk_bf16_f32 v29, v8, v9
    v_cvt_pk_bf16_f32 v31, v10, v11
    buffer_store_dwordx4 v[28:31], v1, s[12:15], 0 offen offset:2048 {st}
    buffer_store_dwordx4 v[12:15], v1, s[12:15], 0 offen offset:3072 {st}
    ''')
    k1end(a)
    a('K1_END:')
    a('s_endpgm')


RS = 528
ATAB = 0
MACC = NB * RS
STG = 2 * NB * RS
PACC = STG + 4096
SPARE = PACC + 1664
PD = 110112
CNT = PD + 1568
LIST = CNT + 128
CAP = 2048
SBUF = LIST + (CAP + 128) * 8
LDS_TOTAL = SBUF + 32768
HT2 = MACC
WH1L = HT2 + 25600
assert WH1L + 32768 <= PD and SPARE <= PD and LDS_TOTAL <= 163840

ACC, CC, D0, D1, EE, MM, GG = 0, 64, 96, 112, 128, 144, 160
SF, PP, I0, I1, QQ, WX = 192, 196, 200, 204, 208, 212
IDX, AD, AB = 216, 218, 222
vLidx, vLpair, vLaoff, vSr, vSw, vLrec, vStg, vFl, vFp, vGend = range(224, 234)
REC, POSQ, PD4, SN, SAn, SAo, PRn, ZZ = 234, 236, 238, 242, 244, 245, 246, 248
vLane, vX0, vX1, vX2, vT, vX4 = 250, 251, 252, 253, 254, 255
vX3 = AD
RCD = 234

sB, sW, sRound, sMode, sQ, sO, sMore = 24, 25, 26, 27, 28, 29, 30
sBeta, sEnd, sG, sGend, sT = 31, 32, 33, 34, 35
sRet = 54
sM0, sM1, sVal = 56, 58, 60
sMask = 64
sC0 = 80
sT0, sT1, sT2, sT3 = 82, 83, 84, 85
sN0 = 86
sGp, sFm, sTail, sSer = 48, 49, 50, 51
sNv = 87
sStamp = 88


def stamp(a, k):
    if OPT['stamps']:
        a(f's_memtime s[{sStamp}:{sStamp + 1}]')
        a('s_waitcnt lgkmcnt(0)')
        a(f'v_writelane_b32 v{vX4}, s{sStamp}, {k}')


def gen_k2(a):
    so = OPT['st_out']
    a('.p2align 8')
    a('.globl egnn_k2_kernel')
    a('.type egnn_k2_kernel,@function')
    a('egnn_k2_kernel:')
    a(f'''
    s_cmp_lt_u32 s2, 256
    s_cbranch_scc1 K2_GO
    s_endpgm
    K2_GO:
    s_load_dwordx4 s[36:39], s[0:1], 0
    s_load_dwordx2 s[40:41], s[0:1], 64
    s_load_dwordx2 s[42:43], s[0:1], 80
    ''')
    if OPT['stamps']:
        a(f'v_mov_b32 v{vX4}, 0')
        a(f's_memtime s[{sStamp + 2}:{sStamp + 3}]')
        a(f's_memrealtime s[{sStamp + 4}:{sStamp + 5}]')
    a(f'''
    v_mov_b32 v{vT}, v0
    v_lshrrev_b32 v1, 6, v0
    v_and_b32 v{vLane}, 63, v0
    v_readfirstlane_b32 s{sW}, v1
    s_and_b32 s3, s2, 7
    s_lshl_b32 s3, s3, 5
    s_lshr_b32 s{sB}, s2, 3
    s_add_u32 s{sB}, s{sB}, s3
    s_mul_i32 s{sN0}, s{sB}, {NB}
    s_mov_b32 s{sRound}, 0
    s_mov_b32 s{sMode}, 0
    s_mov_b32 s{sQ}, 0
    s_mov_b32 s{sO}, 0
    s_sub_u32 s3, {N}, s{sN0}
    s_min_u32 s3, s3, {NB}
    s_lshl_b32 s{sT0}, s{sN0}, 8
    s_lshl_b32 s{sT1}, s3, 8
    s_mul_i32 s{sT2}, s{sN0}, 6
    s_add_u32 s{sT2}, s{sT2}, {N * 256}
    s_mul_i32 s{sT3}, s3, 6
    s_add_u32 s{sT3}, s{sT3}, 2
    s_mov_b32 s{sNv}, s3
    s_waitcnt lgkmcnt(0)
    ''')
    if OPT['stamps']:
        a(f'v_writelane_b32 v{vX4}, s{sStamp + 2}, 0')
    srd(a, 12, 42, WS_REC, WS_END - WS_REC)
    srd(a, 4, 42, 0, N, stride=256)
    srd(a, 8, 38, 0, N * 6)
    srd(a, 16, 36, f's{sT0}', f's{sT1}')
    srd(a, 20, 40, f's{sT0}', f's{sT1}')
    srd(a, 44, 40, f's{sT2}', f's{sT3}')
    a('K2_ROUND:')
    EN = SF
    a(f'''
    v_lshrrev_b32 v1, 4, v{vT}
    v_lshlrev_b32 v2, 10, v1
    s_lshl_b32 s3, s{sB}, 2
    s_add_u32 s3, s3, {WS_OFF - WS_REC}
    ''')
    for i in range(4):
        a(f'buffer_load_dword v{EN + i}, v2, s[12:15], s3 offen')
        if i < 3:
            a(f's_add_u32 s3, s3, 32768')
    a(f'''
    s_cmp_eq_u32 s{sRound}, 0
    s_cbranch_scc0 K2_NOBULK
    ''')
    W1F = 128
    a(f'''
    v_lshrrev_b32 v3, 4, v{vLane}
    v_and_b32 v4, 15, v{vLane}
    s_and_b32 s3, s{sW}, 3
    s_lshl_b32 s{sT1}, s3, 2
    v_add_u32 v5, s{sT1}, v3
    v_xor_b32 v5, v5, v4
    v_lshlrev_b32 v5, 4, v5
    v_lshl_add_u32 v5, v3, 8, v5
    v_lshlrev_b32 v6, 4, v{vLane}
    s_lshl_b32 s{sT0}, s{sW}, 10
    s_add_u32 m0, s{sT0}, {HT2}
    s_lshl_b32 s3, s3, 13
    s_add_u32 s3, s3, {WS_W - WS_REC}
    buffer_load_dwordx4 v5, s[16:19], s{sT0} offen lds
    ''')
    for i in (1, 2):
        a(f'''
        s_add_u32 m0, s{sT0}, {HT2 + 8192 * i}
        s_add_u32 s{sT1}, s{sT0}, {8192 * i}
        buffer_load_dwordx4 v5, s[16:19], s{sT1} offen lds
        ''')
    a(f'''
    v_xor_b32 v7, v3, v4
    v_lshlrev_b32 v7, 4, v7
    v_lshl_add_u32 v7, v3, 8, v7
    s_mov_b32 m0, {HT2 + 24576}
    s_movk_i32 s{sT1}, 24576
    buffer_load_dwordx4 v7, s[16:19], s{sT1} offen lds
    ''')
    for s in range(8):
        if s == 4:
            a('s_add_u32 s3, s3, 4096')
        a(f'buffer_load_dwordx4 {vr(W1F + 4 * s, 4)}, v6, s[12:15], s3 offen offset:{1024 * (s & 3)}')
    a(f'''
    s_lshl_b32 s{sT0}, s{sW}, 12
    s_add_u32 m0, s{sT0}, {WH1L}
    s_add_u32 s{sT0}, s{sT0}, {WS_W - WS_REC + 32768}
    ''')
    for i in range(4):
        a(f'buffer_load_dwordx4 v6, s[12:15], s{sT0} offen offset:{1024 * i} lds')
    a(f's_mov_b32 s3, {WS_W - WS_REC + 3 * 32768}')
    for i in range(4):
        a(f'buffer_load_dwordx4 {vr(I0 + 4 * i, 4)}, v6, s[12:15], s3 offen offset:{1024 * i}')
    a(f'''
    v_add_u32 v7, s{sN0}, v{vT}
    v_mul_u32_u24 v7, 6, v7
    v_and_b32 v7, -4, v7
    buffer_load_dwordx2 v[{vX1}:{vX2}], v7, s[8:11], 0 offen
    ''')
    NBULK = 4 + 8 + 4 + 4 + 1
    a(f'''
    K2_NOBULK:
    v_and_b32 v8, 31, v{vLane}                  ; j
    v_lshrrev_b32 v9, 5, v{vLane}               ; h
    v_and_b32 v10, 3, v{vLane}                  ; c
    v_lshlrev_b32 v{IDX + 1}, 4, v10
    v_lshl_add_u32 v{IDX + 1}, v9, 6, v{IDX + 1}
    v_lshlrev_b32 v{AB}, 4, v8
    v_mov_b32 v{AB + 1}, v{AB}
    v_bfe_u32 v11, v{vLane}, 2, 1
    v_bfe_u32 v12, v{vLane}, 3, 2
    v_lshl_add_u32 v{vX0}, v11, 2, v12          ; lambda(e)
    s_lshl_b32 s3, s{sW}, 9
    s_add_u32 s3, s3, {STG}
    v_lshl_add_u32 v{vLpair}, v{vX0}, 2, s3
    v_lshl_add_u32 v{vStg}, v{vLane}, 2, s3
    s_add_u32 s3, s3, 256
    v_lshl_add_u32 v{vLaoff}, v9, 4, s3
    s_lshl_b32 s3, s{sW}, 12
    s_add_u32 s3, s3, {SBUF}
    v_lshl_add_u32 v{vSw}, v{vLane}, 6, s3
    v_bfe_u32 v11, v{vLane}, 2, 2               ; r
    v_lshl_add_u32 v11, v9, 2, v11
    v_lshl_add_u32 v{vSr}, v11, 6, s3
    v_bfe_u32 v11, v{vLane}, 4, 1
    v_lshl_add_u32 v{vSr}, v11, 5, v{vSr}
    v_lshl_add_u32 v{vSr}, v10, 3, v{vSr}
    v_mul_u32_u24 v{vFl}, {RS}, v9
    v_lshl_add_u32 v{vFl}, v8, 2, v{vFl}
    v_add_u32 v{vFl}, {MACC}, v{vFl}
    v_bfe_u32 v12, v{vLane}, 3, 1               ; p
    v_lshl_add_u32 v12, v12, 1, v11
    v_lshl_add_u32 v12, v12, 1, v9
    v_bfe_u32 v11, v{vLane}, 2, 1
    v_lshlrev_b32 v11, 2, v11
    v_lshl_add_u32 v{vFp}, v12, 4, v11
    v_add_u32 v{vFp}, {PACC}, v{vFp}
    v_lshlrev_b32 v11, 1, v9
    v_cmp_eq_u32 s[{sM0}:{sM0 + 1}], v10, v11
    v_add_u32 v11, 1, v11
    v_cmp_eq_u32 s[{sM1}:{sM1 + 1}], v10, v11
    ''')
    a(f'''
    v_mov_b32 v12, 0
    v_mov_b32 v13, 0
    v_mov_b32 v14, 0
    v_mov_b32 v15, 0
    v_bfrev_b32 v16, 1
    v_mov_b32 v17, 0
    v_bfrev_b32 v18, 1
    v_mov_b32 v19, 0
    v_lshlrev_b32 v3, 4, v{vT}
    v_add_u32 v4, {LIST}, v3
    v_add_u32 v3, {SBUF}, v3
    ds_write_b128 v4, v[16:19]
    ds_write_b128 v4, v[16:19] offset:8192
    ds_write_b128 v3, v[12:15]
    ds_write_b128 v3, v[12:15] offset:8192
    ds_write_b128 v3, v[12:15] offset:16384
    ds_write_b128 v3, v[12:15] offset:24576
    v_lshlrev_b32 v3, 4, v{vLane}
    v_add_u32 v3, {LIST + 16384}, v3
    ds_write_b128 v3, v[16:19]
    v_and_b32 v3, 31, v{vLane}
    v_lshlrev_b32 v3, 2, v3
    v_add_u32 v3, {CNT}, v3
    ds_write_b32 v3, v12
    v_and_b32 v3, 15, v{vT}
    v_lshl_add_u32 v3, v3, 1, s{sO}             ; o + 2*(t&15)
    v_mul_u32_u24 v4, {CHB}, v1
    v_lshl_add_u32 v4, v3, 3, v4
    v_bfrev_b32 v5, 1
    s_cmp_eq_u32 s{sRound}, 0
    s_cbranch_scc1 K2_W0
    s_waitcnt vmcnt(0)
    K2_W0:
    s_waitcnt vmcnt({NBULK})
    ''')
    stamp(a, 1)
    for i in range(4):
        a(f'''
        v_lshrrev_b32 v{8 + i}, 16, v{EN + i}
        v_and_b32 v{EN + i}, 0xffff, v{EN + i}
        v_sub_u32 v{12 + i}, v{8 + i}, v3
        v_lshl_add_u32 v{EN + i}, v{EN + i}, 3, v4
        v_cmp_lt_i32 s[{sMask + 4 * i}:{sMask + 4 * i + 1}], 0, v{12 + i}
        v_cmp_lt_i32 s[{sMask + 4 * i + 2}:{sMask + 4 * i + 3}], 1, v{12 + i}
        ''')
    a(f'''
    s_cmp_eq_u32 s{sMode}, 0
    s_cbranch_scc1 K2_ALLQ
    ''')
    for i in range(4):
        a(f'''
        s_cmp_eq_u32 s{sQ}, {i}
        s_cselect_b64 s[{sMask + 4 * i}:{sMask + 4 * i + 1}], s[{sMask + 4 * i}:{sMask + 4 * i + 1}], 0
        s_cselect_b64 s[{sMask + 4 * i + 2}:{sMask + 4 * i + 3}], s[{sMask + 4 * i + 2}:{sMask + 4 * i + 3}], 0
        ''')
    a('K2_ALLQ:')
    a('s_mov_b32 s3, 0')
    for i in range(4):
        a(f'''
        v_cndmask_b32_e64 v{EN + i}, v5, v{EN + i}, s[{sMask + 4 * i}:{sMask + 4 * i + 1}]
        buffer_load_dwordx4 {vr(RCD + 4 * i, 4)}, v{EN + i}, s[12:15], s3 offen
        ''')
        if i < 3:
            a(f's_add_u32 s3, s3, {32 * CHB}')
    a(f'''
    v_max3_u32 v8, v8, v9, v10
    v_max_u32 v{vX3}, v8, v11
    s_waitcnt vmcnt(4) lgkmcnt(0)
    s_barrier
    ''')
    stamp(a, 2)
    a(f'''
    s_cmp_eq_u32 s{sRound}, 0
    s_cbranch_scc0 K2_NOGEMM
    ''')
    H0, H1, AO, WB = 0, 32, 96, 160
    T = SF
    a(f'''
    v_add_u32 v{T}, s{sN0}, v{vT}
    v_lshlrev_b32 v{T}, 4, v{T}
    v_alignbit_b32 v{T + 1}, v{vX2}, v{vX1}, v{T}
    v_lshrrev_b32 v{T + 6}, v{T}, v{vX2}
    v_lshlrev_b32 v{T + 4}, 16, v{T + 1}
    v_and_b32 v{T + 5}, 0xffff0000, v{T + 1}
    v_lshlrev_b32 v{T + 6}, 16, v{T + 6}
    v_mov_b32 v{T + 7}, 0
    v_lshlrev_b32 v{T}, 4, v{vT}
    v_add_u32 v{T}, {PD}, v{T}
    v_cmp_gt_u32 vcc, {NB}, v{vT}
    s_and_saveexec_b64 s[{sT0}:{sT0 + 1}], vcc
    ds_write_b128 v{T}, {vr(T + 4, 4)}
    s_mov_b64 exec, s[{sT0}:{sT0 + 1}]
    v_and_b32 v{T}, 31, v{vLane}                ; i
    v_lshrrev_b32 v{T + 1}, 5, v{vLane}         ; h
    v_and_b32 v{T + 2}, 15, v{vLane}
    v_xor_b32 v{T + 2}, v{T + 2}, v{T + 1}
    v_lshlrev_b32 v{T + 2}, 4, v{T + 2}
    v_lshl_add_u32 v{T + 2}, v{T}, 8, v{T + 2}
    s_lshr_b32 s3, s{sW}, 1                     ; nt
    s_lshl_b32 s{sT0}, s3, 13
    v_add_u32 v{T + 2}, s{sT0}, v{T + 2}
    s_and_b32 s{sT0}, s{sW}, 1
    s_lshl_b32 s{sT0}, s{sT0}, 14
    s_add_u32 s{sT0}, s{sT0}, {WH1L}
    v_lshl_add_u32 v{T + 3}, v{vLane}, 4, s{sT0}
    ''')
    for s in range(8):
        if s:
            a(f'v_xor_b32 v{T + 4}, {32 * s}, v{T + 2}')
        a(f'ds_read_b128 {vr(H0 + 4 * s, 4)}, v{T + 4 if s else T + 2} offset:{HT2}')
        a(f'v_xor_b32 v{T + 5}, {8192 + 32 * s}, v{T + 2}')
        a(f'ds_read_b128 {vr(H1 + 4 * s, 4)}, v{T + 5} offset:{HT2}')
        if s >= 4:
            k = s - 4
            a(f's_waitcnt lgkmcnt(8)')
            a(mfma(AO, W1F + 4 * k, H0 + 4 * k, '0' if k == 0 else None))
            a(mfma(AO + 16, W1F + 4 * k, H1 + 4 * k, '0' if k == 0 else None))
    for k in range(4, 8):
        a(f'ds_read_b128 {vr(WB + 8 * (k - 4), 4)}, v{T + 3} offset:{2048 * (k - 4)}')
        a(f'ds_read_b128 {vr(WB + 8 * (k - 4) + 4, 4)}, v{T + 3} offset:{2048 * (k - 4) + 1024}')
        a(f's_waitcnt lgkmcnt(8)')
        a(mfma(AO, W1F + 4 * k, H0 + 4 * k))
        a(mfma(AO + 16, W1F + 4 * k, H1 + 4 * k))
    for s in range(8):
        a(f'ds_read_b128 {vr(W1F + 4 * s, 4)}, v{T + 3} offset:{8192 + 1024 * s}')
        a(f's_waitcnt lgkmcnt(8)')
        a(mfma(CC, H0 + 4 * s, WB + 4 * s, '0' if s == 0 else None))
    a(f'''
    s_mov_b32 s{sC0}, {NLOG2E:#x}
    s_mov_b32 s{sC0 + 1}, {NLOG2E:#x}
    s_lshl_b32 s{sT0}, s3, 5
    v_add_u32 v{T + 4}, s{sT0}, v{T}
    v_xor_b32 v{T + 5}, 32, v{T + 4}
    v_mul_u32_u24 v{T + 6}, {RS}, v{T + 4}
    v_mul_u32_u24 v{T + 7}, {RS}, v{T + 5}
    s_and_b32 s3, s{sW}, 3
    s_lshl_b32 s3, s3, 7
    v_lshl_add_u32 v{T + 1}, v{T + 1}, 4, s3
    v_add_u32 v{T + 6}, v{T + 6}, v{T + 1}
    v_add_u32 v{T + 7}, v{T + 7}, v{T + 1}
    s_movk_i32 s3, {NB}
    v_cmp_gt_u32 s[{sT0}:{sT0 + 1}], s3, v{T + 4}
    v_cmp_gt_u32 s[{sT2}:{sT2 + 1}], s3, v{T + 5}
    ''')
    for s in range(8):
        a(f's_waitcnt lgkmcnt({7 - s})')
        a(mfma(CC + 16, H0 + 4 * s, W1F + 4 * s, '0' if s == 0 else None))
    for r in range(0, 32, 2):
        a(f'v_pk_mul_f32 {vr(AO + r, 2)}, {vr(AO + r, 2)}, s[{sC0}:{sC0 + 1}]')
    a(f's_mov_b64 exec, s[{sT0}:{sT0 + 1}]')
    for jj in range(4):
        a(f'ds_write_b128 v{T + 6}, {vr(AO + 4 * jj, 4)} offset:{ATAB + 32 * jj}')
    a(f's_mov_b64 exec, s[{sT2}:{sT2 + 1}]')
    for jj in range(4):
        a(f'ds_write_b128 v{T + 7}, {vr(AO + 16 + 4 * jj, 4)} offset:{ATAB + 32 * jj}')
    a('s_mov_b64 exec, -1')
    for r in range(0, 32, 2):
        a(f'v_pk_mul_f32 {vr(CC + r, 2)}, {vr(CC + r, 2)}, s[{sC0}:{sC0 + 1}]')
    a('K2_NOGEMM:')
    stamp(a, 3)
    G4, RK = 0, 8
    a(f'''
    v_mov_b32 v16, 1
    v_mov_b32 v17, {CNT}
    s_add_u32 s3, s{sO}, 32
    v_cmp_lt_u32 vcc, s3, v{vX3}
    s_and_saveexec_b64 s[{sT0}:{sT0 + 1}], vcc
    ds_write_b32 v17, v16 offset:64
    s_mov_b64 exec, -1
    s_waitcnt vmcnt(0)
    ''')
    for x in range(8):
        a(f'v_lshrrev_b32 v{G4 + x}, 17, v{RCD + 2 * x}')
        a(f'v_and_b32 v{G4 + x}, 0x3c, v{G4 + x}')
        a(f'v_add_u32 v{24 + x}, {CNT}, v{G4 + x}')
    for x in range(8):
        a(f's_mov_b64 exec, s[{sMask + 2 * x}:{sMask + 2 * x + 1}]')
        a(f'ds_add_rtn_u32 v{RK + x}, v{24 + x}, v16')
    a(f'''
    s_mov_b64 exec, -1
    v_and_b32 v18, 15, v{vLane}
    v_lshl_add_u32 v18, v18, 2, v17
    s_waitcnt lgkmcnt(0)
    s_barrier
    ds_read_b32 v19, v18
    ds_read_b32 v20, v17 offset:64
    s_waitcnt lgkmcnt(0)
    v_add_u32 v19, 15, v19
    v_lshrrev_b32 v19, 4, v19
    v_readfirstlane_b32 s{sMore}, v20
    v_mov_b32 v{vGend}, v19
    v_mov_b32 v21, v19
    s_nop 0
    v_add_u32_dpp v{vGend}, v{vGend}, v{vGend} row_shr:1 row_mask:0xf bank_mask:0xf
    s_nop 1
    v_add_u32_dpp v{vGend}, v{vGend}, v{vGend} row_shr:2 row_mask:0xf bank_mask:0xf
    s_nop 1
    v_add_u32_dpp v{vGend}, v{vGend}, v{vGend} row_shr:4 row_mask:0xf bank_mask:0xf
    s_nop 1
    v_add_u32_dpp v{vGend}, v{vGend}, v{vGend} row_shr:8 row_mask:0xf bank_mask:0xf
    v_sub_u32 v19, v{vGend}, v19
    v_readlane_b32 s{sT}, v{vGend}, 15
    v_lshlrev_b32 v19, 7, v19
    v_add_u32 v19, {LIST}, v19
    s_cmp_gt_u32 s{sT}, {CAP // 16}
    s_cbranch_scc1 K2_OVER
    s_lshr_b32 s{sT0}, s{sT}, 3
    v_cmp_lt_u32 vcc, s{sT0}, v21
    s_and_b32 s{sSer}, vcc_lo, 0x1fff
    s_mov_b32 s{sFm}, s{sRound}
    s_mov_b32 s{sTail}, 0
    v_cmp_eq_u32 vcc, 0, v21
    s_and_b32 s3, vcc_lo, 0x1fff
    s_cbranch_scc0 K2_NOZERO
    s_cmp_eq_u32 s{sRound}, 0
    s_cbranch_scc0 K2_NOZERO
    s_call_b64 s[{sRet}:{sRet + 1}], K2_ZERO
    K2_NOZERO:
    ''')
    for x in range(8):
        a(f'ds_bpermute_b32 v{24 + x}, v{G4 + x}, v19')
    a(f'''
    s_lshr_b32 s{sT0}, s{sT}, 3
    s_and_b32 s{sT1}, s{sT}, 7
    s_mul_i32 s{sBeta}, s{sT0}, s{sW}
    s_min_u32 s{sT2}, s{sW}, s{sT1}
    s_add_u32 s{sBeta}, s{sBeta}, s{sT2}
    s_cmp_lt_u32 s{sW}, s{sT1}
    s_addc_u32 s{sEnd}, s{sBeta}, s{sT0}
    s_lshl_b32 s3, s{sBeta}, 7
    s_add_u32 s3, s3, {LIST}
    v_lshl_add_u32 v{vLidx}, v{vX0}, 3, s3
    v_lshl_add_u32 v{vLrec}, v{vLane}, 3, s3
    v_cmp_ge_u32 vcc, s{sBeta}, v{vGend}
    s_and_b32 vcc_lo, vcc_lo, 0x1fff
    s_bcnt1_i32_b32 s{sG}, vcc_lo
    s_waitcnt lgkmcnt(0)
    ''')
    for x in range(8):
        a(f'v_lshl_add_u32 v{24 + x}, v{RK + x}, 3, v{24 + x}')
    a(f'v_readlane_b32 s{sGend}, v{vGend}, s{sG}')
    for x in range(8):
        a(f's_mov_b64 exec, s[{sMask + 2 * x}:{sMask + 2 * x + 1}]')
        a(f'ds_write_b64 v{24 + x}, {vr(RCD + 2 * x, 2)}')
    a(f'''
    s_mov_b64 exec, -1
    s_waitcnt lgkmcnt(0)
    s_barrier
    ''')
    stamp(a, 4)
    a(f'''
    ds_read_b64 {vr(REC, 2)}, v{vLrec}
    ds_read_u16 v0, v{vLidx}
    ds_read_u16 v2, v{vLidx} offset:64
    ds_read_u16 v4, v{vLidx} offset:128
    ds_read_u16 v6, v{vLidx} offset:192
    ds_read_u16 v{IDX}, v{vLidx} offset:256
    v_mov_b32 v1, v{IDX + 1}
    v_mov_b32 v3, v{IDX + 1}
    v_mov_b32 v5, v{IDX + 1}
    v_mov_b32 v7, v{IDX + 1}
    s_add_u32 s3, s{sBeta}, 1
    s_cmp_lt_u32 s{sBeta}, s{sEnd}
    s_cselect_b32 s6, {N}, 0
    s_waitcnt lgkmcnt(5)
    ''')
    stage1(a)
    a('s_waitcnt lgkmcnt(1)')
    for t in range(4):
        if t == 2:
            a(f's_cmp_lt_u32 s3, s{sEnd}')
            a(f's_cselect_b32 s6, {N}, 0')
        a(f'buffer_load_dwordx4 {vr(GG + 8 * t, 4)}, v[{2 * t}:{2 * t + 1}], s[4:7], 0 idxen offen')
        a(f'buffer_load_dwordx4 {vr(GG + 8 * t + 4, 4)}, v[{2 * t}:{2 * t + 1}], s[4:7], 0 idxen offen offset:128')
    a(f'''
    v_mov_b64 {vr(ZZ, 2)}, 0
    v_mov_b64 v[8:9], 0
    v_mov_b64 v[10:11], 0
    s_nop 1
    ''')
    a(mfma(16, 8, 8, '0'))
    a(mfma(32, 8, 8, '0'))
    a(mfma(48, 8, 8, '0'))
    a(mfma(MM, 8, 8, '0'))
    a(f'''
    v_mov_b64 {vr(SF, 2)}, 0
    v_mov_b64 {vr(SF + 2, 2)}, 0
    v_mov_b64 {vr(PP, 2)}, 0
    v_mov_b64 {vr(PP + 2, 2)}, 0
    v_mov_b32 v{SAo}, v{vSw}
    s_waitcnt lgkmcnt(0)
    ''')
    a(mfma(0, SF, SF, '0'))
    a(f'''
    s_cmp_lt_u32 s{sBeta}, s{sEnd}
    s_cbranch_scc0 K2_WAVE_DONE
    s_waitcnt vmcnt(8)
    ''')
    stamp(a, 5)
    stage2(a)
    stage_w_aoff(a)
    stage_w_pair(a)
    stage_w_s(a)
    a(f'''
    ds_read_b128 {vr(AD, 4)}, v{vLaoff}
    s_mov_b64 exec, s[{sM0}:{sM0 + 1}]
    ds_read2_b32 {vr(PP, 2)}, v{vLpair} offset0:0 offset1:0
    s_mov_b64 exec, s[{sM1}:{sM1 + 1}]
    ds_read2_b32 {vr(PP + 2, 2)}, v{vLpair} offset0:0 offset1:0
    s_mov_b64 exec, -1
    s_waitcnt lgkmcnt(2)
    v_lshl_add_u64 {vr(AD, 2)}, {vr(AD, 2)}, 0, {vr(AB, 2)}
    v_lshl_add_u64 {vr(AD + 2, 2)}, {vr(AD + 2, 2)}, 0, {vr(AB, 2)}
    ''')
    for jj in range(4):
        a(f'ds_read_b128 {vr(D0 + 4 * jj, 4)}, v{AD + jj}')
    a(f'''
    ds_read_b128 {vr(AD, 4)}, v{vLaoff} offset:32
    s_waitcnt vmcnt(6) lgkmcnt(0)
    ''')
    a(mfma(D0, PP, QQ))
    a(mfma(D0, GG, I0))
    a(mfma(D0, GG + 4, I1))
    a(f'''
    v_lshl_add_u64 {vr(AD, 2)}, {vr(AD, 2)}, 0, {vr(AB, 2)}
    v_lshl_add_u64 {vr(AD + 2, 2)}, {vr(AD + 2, 2)}, 0, {vr(AB, 2)}
    s_nop 7
    ''')
    stamp(a, 6)
    a('.p2align 6')
    a('K2_LOOP:')
    for tau in range(8):
        slot(a, tau)
    a('s_branch K2_LOOP')
    a('K2_DRAIN:')
    a('s_nop 0')
    for c in range(4):
        a(mfma(ACC + 16 * c, SF, MM + 4 * c))
    a(f'''
    s_cmp_eq_u32 s{sBeta}, s{sGend}
    s_cselect_b32 s{sFm}, s{sFm}, 2
    s_cselect_b32 s{sTail}, 0, 1
    s_nop 8
    s_call_b64 s[{sRet}:{sRet + 1}], K2_FLUSH
    K2_WAVE_DONE:
    ''')
    stamp(a, 7)
    a(f'''
    s_cmp_lg_u32 s{sMode}, 0
    s_cselect_b32 s3, 3, 0
    s_cmp_lt_u32 s{sQ}, s3
    s_cselect_b32 s{sT3}, 1, 0
    s_or_b32 s3, s{sT3}, s{sMore}
    s_cbranch_scc1 K2_NOPRE
    ''')
    epi_prefetch(a)
    a(f'''
    K2_NOPRE:
    s_waitcnt lgkmcnt(0)
    s_barrier
    s_mov_b32 s{sGend}, 0
    K2_TAILS:
    s_cmp_eq_u32 s{sSer}, 0
    s_cselect_b32 s3, s{sW}, s{sGend}
    s_cmp_eq_u32 s3, s{sW}
    s_cselect_b32 s3, s{sTail}, 0
    s_cmp_eq_u32 s3, 0
    s_cbranch_scc1 K2_NOTAIL
    s_call_b64 s[{sRet}:{sRet + 1}], K2_FLUSH2
    K2_NOTAIL:
    s_cmp_eq_u32 s{sSer}, 0
    s_cbranch_scc1 K2_TAILD
    s_add_u32 s{sGend}, s{sGend}, 1
    s_cmp_lt_u32 s{sGend}, 8
    s_cbranch_scc0 K2_TAILD
    s_barrier
    s_branch K2_TAILS
    K2_TAILD:
    s_or_b32 s3, s{sT3}, s{sMore}
    s_cbranch_scc0 K2_EPI
    s_add_u32 s{sQ}, s{sQ}, 1
    s_cmp_lg_u32 s{sT3}, 0
    s_cbranch_scc1 K2_NEXT
    s_mov_b32 s{sMode}, 0
    s_mov_b32 s{sQ}, 0
    s_add_u32 s{sO}, s{sO}, 32
    K2_NEXT:
    s_mov_b32 s{sRound}, 1
    s_waitcnt vmcnt(0) lgkmcnt(0)
    s_barrier
    s_branch K2_ROUND
    K2_OVER:
    s_mov_b32 s{sMode}, 1
    s_mov_b32 s{sQ}, 0
    s_cmp_eq_u32 s{sRound}, 0
    s_cbranch_scc0 K2_NEXT
    s_call_b64 s[{sRet}:{sRet + 1}], K2_ZERO
    s_branch K2_NEXT
    K2_ZERO:
    ''')
    zero_acc(a)
    a(f's_setpc_b64 s[{sRet}:{sRet + 1}]')
    flush(a)
    HR, MB, WF, HL, HH = 192, 96, 128, 128, 144
    a('K2_EPI:')
    a('s_nop 1')
    a('s_waitcnt vmcnt(16)')
    a('s_barrier')
    stamp(a, 8)
    for s in range(8):
        a(f'ds_read_b128 {vr(8 * s, 4)}, v{vX1} offset:{MACC + 64 * s}')
        a(f'ds_read_b128 {vr(8 * s + 4, 4)}, v{vX1} offset:{MACC + 64 * s + 16}')
        a(f'ds_read_b128 {vr(WF + 8 * s, 4)}, v{vX0} offset:{1024 * s}')
        a(f'ds_read_b128 {vr(WF + 8 * s + 4, 4)}, v{vX0} offset:{8192 + 1024 * s}')
        if s >= 2:
            epi_step(a, s - 2, 8, MB, WF)
    epi_step(a, 6, 4, MB, WF)
    epi_step(a, 7, 0, MB, WF)
    a(f'''
    s_cmp_lt_u32 s{sW}, 2
    s_cbranch_scc0 K2_NOPOS
    v_lshlrev_b32 v0, 4, v{vT}
    v_add_u32 v1, {PD}, v0
    v_add_u32 v0, {PACC}, v0
    ds_read_b128 v[4:7], v1
    ds_read_b128 v[8:11], v0
    v_mul_u32_u24 v2, 6, v{vT}
    s_waitcnt lgkmcnt(0)
    v_add_f32 v4, v4, v8
    v_add_f32 v5, v5, v9
    v_add_f32 v6, v6, v10
    v_cvt_pk_bf16_f32 v4, v4, v5
    v_cvt_pk_bf16_f32 v6, v6, v6
    v_cmp_gt_u32 vcc, s{sNv}, v{vT}
    s_and_saveexec_b64 s[{sT2}:{sT2 + 1}], vcc
    s_cbranch_execz K2_NOPOS1
    buffer_store_short v4, v2, s[44:47], 0 offen {so}
    buffer_store_short_d16_hi v4, v2, s[44:47], 0 offen offset:2 {so}
    buffer_store_short v6, v2, s[44:47], 0 offen offset:4 {so}
    s_mov_b64 exec, -1
    s_waitcnt vmcnt(3)
    s_branch K2_HROK
    K2_NOPOS1:
    s_mov_b64 exec, -1
    K2_NOPOS:
    s_waitcnt vmcnt(0)
    K2_HROK:
    ''')
    for r in range(16):
        a(f'v_lshlrev_b32 v{HL + r}, 16, v{HR + r}')
        a(f'v_and_b32 v{HH + r}, 0xffff0000, v{HR + r}')
    for u in range(2):
        for r in range(16):
            a(f'v_exp_f32 v{16 * u + r}, v{CC + 16 * u + r}')
        for r in range(0, 16, 2):
            a(f'v_pk_add_f32 {vr(16 * u + r, 2)}, {vr(16 * u + r, 2)}, 1.0 op_sel_hi:[1,0]')
        for r in range(16):
            a(f'v_rcp_f32 v{16 * u + r}, v{16 * u + r}')
        for r in range(0, 16, 2):
            a(f'v_pk_mul_f32 {vr(16 * u + r, 2)}, {vr(16 * u + r, 2)}, {vr(CC + 16 * u + r, 2)}')
        for r in range(0, 16, 2):
            a(f'v_pk_fma_f32 {vr(16 * u + r, 2)}, {vr(16 * u + r, 2)}, s[{sC0}:{sC0 + 1}], {vr((HL, HH)[u] + r, 2)}')
    for r in range(16):
        jj, ii = r >> 2, r & 3
        a(f'v_cvt_pk_bf16_f32 v{32 + r}, v{r}, v{16 + r}')
        a(f'buffer_store_dword v{32 + r}, v{vX3}, s[20:23], s{sT0 if jj < 2 else sT1} offen offset:{(jj & 1) * 2048 + ii * 256} {so}')
    if OPT['stamps']:
        stamp(a, 9)
        a('s_waitcnt vmcnt(0)')
        stamp(a, 10)
        a(f'''
        s_memrealtime s[38:39]
        s_waitcnt lgkmcnt(0)
        v_writelane_b32 v{vX4}, s{sStamp + 4}, 62
        v_writelane_b32 v{vX4}, s38, 63
        s_lshl_b32 s3, s2, 3
        s_add_u32 s3, s3, s{sW}
        s_lshl_b32 s3, s3, 8
        s_add_u32 s3, s3, {0x1000000}
        ''')
        srd(a, 12, 42, 's3', 256)
        a(f'''
        v_lshlrev_b32 v0, 2, v{vLane}
        buffer_store_dword v{vX4}, v0, s[12:15], 0 offen
        ''')
        if OPT.get('dbg'):
            a(f'''
            s_load_dwordx2 s[36:37], s[0:1], 72
            s_memrealtime s[38:39]
            s_waitcnt lgkmcnt(0)
            s_sub_u32 s38, s38, s{sStamp + 4}
            v_readlane_b32 s3, v{vX4}, 0
            s_nop 3
            v_subrev_u32 v{vX4}, s3, v{vX4}
            v_writelane_b32 v{vX4}, s38, 0
            s_or_b32 s3, s2, s{sW}
            s_cmp_eq_u32 s3, 0
            s_cselect_b32 s3, 64, 0
            ''')
            srd(a, 12, 36, 0, 's3')
            srd(a, 16, 42, 0x1100000, 64 * K1_GRID)
            a(f'''
            v_lshlrev_b32 v1, 6, v{vLane}
            v_mov_b32 v4, -1
            v_mov_b32 v5, 0
            ''')
            for i in range(6):
                a(f'''
                v_min_u32 v2, {64 * (K1_GRID - 1)}, v1
                buffer_load_dwordx2 v[6:7], v2, s[16:19], 0 offen
                v_add_u32 v1, 4096, v1
                s_waitcnt vmcnt(0)
                v_subrev_u32 v6, s{sStamp + 4}, v6
                v_subrev_u32 v7, s{sStamp + 4}, v7
                v_add_u32 v6, 0x10000, v6
                v_add_u32 v7, 0x10000, v7
                v_min_u32 v4, v4, v6
                v_max_u32 v5, v5, v7
                ''')
            for d in ('row_shr:1', 'row_shr:2', 'row_shr:4', 'row_shr:8', 'row_bcast:15', 'row_bcast:31'):
                a(f'''
                s_nop 1
                v_min_u32_dpp v4, v4, v4 {d} row_mask:0xf bank_mask:0xf
                v_max_u32_dpp v5, v5, v5 {d} row_mask:0xf bank_mask:0xf
                ''')
            a(f'''
            s_nop 1
            v_readlane_b32 s36, v4, 63
            v_readlane_b32 s37, v5, 63
            s_nop 3
            s_sub_u32 s36, 0x10000, s36
            s_sub_u32 s37, 0x10000, s37
            v_writelane_b32 v{vX4}, s36, 11
            v_writelane_b32 v{vX4}, s37, 12
            ''')
            a(f'buffer_store_dword v{vX4}, v0, s[12:15], 0 offen')
    a('s_endpgm')


def epi_prefetch(a):
    HR = 192
    a(f'''
    v_lshlrev_b32 v{vX0}, 4, v{vLane}
    s_lshl_b32 s{sT0}, s{sW}, 12
    s_add_u32 m0, s{sT0}, {SBUF}
    s_add_u32 s{sT0}, s{sT0}, {WS_W - WS_REC + 65536}
    v_and_b32 v{vX1}, 31, v{vLane}
    v_lshrrev_b32 v{vX2}, 5, v{vLane}
    s_waitcnt lgkmcnt(0)
    ''')
    for i in range(4):
        a(f'buffer_load_dwordx4 v{vX0}, s[12:15], s{sT0} offen offset:{1024 * i} lds')
    a(f'''
    v_lshlrev_b32 v{vX3}, 10, v{vX2}
    v_lshl_add_u32 v{vX3}, v{vX1}, 2, v{vX3}
    s_lshr_b32 s3, s{sW}, 1
    s_lshl_b32 s{sT0}, s3, 13
    s_and_b32 s{sT2}, s{sW}, 1
    s_lshl_b32 s{sT1}, s{sT2}, 7
    s_add_u32 s{sT0}, s{sT0}, s{sT1}
    s_add_u32 s{sT1}, s{sT0}, 4096
    ''')
    for r in range(16):
        jj, ii = r >> 2, r & 3
        a(f'buffer_load_dword v{HR + r}, v{vX3}, s[16:19], s{sT0 if jj < 2 else sT1} offen offset:{(jj & 1) * 2048 + ii * 256}')
    a(f'''
    s_lshl_b32 s3, s3, 5
    v_add_u32 v{vX1}, s3, v{vX1}
    v_mul_u32_u24 v{vX1}, {RS}, v{vX1}
    v_lshl_add_u32 v{vX1}, v{vX2}, 5, v{vX1}
    s_lshl_b32 s{sT2}, s{sT2}, 14
    s_add_u32 s{sT2}, s{sT2}, {SBUF}
    v_add_u32 v{vX0}, s{sT2}, v{vX0}
    s_mov_b32 s{sC0}, {NLN2:#x}
    s_mov_b32 s{sC0 + 1}, {NLN2:#x}
    ''')


def epi_step(a, s, wait, MB, WF):
    a(f's_waitcnt lgkmcnt({wait})')
    for x in range(4):
        a(f'v_cvt_pk_bf16_f32 v{MB + 4 * s + x}, v{8 * s + 2 * x}, v{8 * s + 2 * x + 1}')
    a('s_nop 1')
    a(mfma(CC, MB + 4 * s, WF + 8 * s))
    a(mfma(CC + 16, MB + 4 * s, WF + 8 * s + 4))


def stage1(a):
    t = EE
    a(f'''
    v_and_b32 v{t}, 0xffff, v{REC}
    v_bfe_u32 v{t + 1}, v{REC}, 16, 7
    v_mul_u32_u24 v{t}, 6, v{t}
    v_lshlrev_b32 v{t + 1}, 4, v{t + 1}
    v_and_b32 v{t}, -4, v{t}
    v_add_u32 v{t + 1}, {PD}, v{t + 1}
    buffer_load_dwordx2 {vr(POSQ, 2)}, v{t}, s[8:11], 0 offen
    ds_read_b128 {vr(PD4, 4)}, v{t + 1}
    ''')


def stage2(a):
    t = EE
    a(f'''
    v_lshlrev_b32 v{t}, 4, v{REC}
    v_cmp_lt_i32 s[{sVal}:{sVal + 1}], -1, v{REC}
    v_alignbit_b32 v{t + 1}, v{POSQ + 1}, v{POSQ}, v{t}
    v_lshrrev_b32 v{t + 2}, v{t}, v{POSQ + 1}
    v_lshlrev_b32 v{t + 3}, 16, v{t + 1}
    v_and_b32 v{t + 4}, 0xffff0000, v{t + 1}
    v_lshlrev_b32 v{t + 5}, 16, v{t + 2}
    v_sub_f32 v{t + 3}, v{PD4}, v{t + 3}
    v_sub_f32 v{t + 4}, v{PD4 + 1}, v{t + 4}
    v_sub_f32 v{t + 5}, v{PD4 + 2}, v{t + 5}
    v_cvt_pk_bf16_f32 v{SN}, 1.0, v{t + 3}
    v_cvt_pk_bf16_f32 v{SN + 1}, v{t + 4}, v{t + 5}
    v_bfe_u32 v{t + 6}, v{REC}, 16, 7
    v_bfe_u32 v{t + 7}, v{REC}, 16, 3
    v_and_b32 v{t + 3}, 0xffff0000, v{SN}
    v_lshlrev_b32 v{t + 4}, 16, v{SN + 1}
    v_and_b32 v{t + 5}, 0xffff0000, v{SN + 1}
    v_mul_f32 v{t + 3}, v{t + 3}, v{t + 3}
    v_mul_f32 v{t + 4}, v{t + 4}, v{t + 4}
    v_mul_f32 v{t + 5}, v{t + 5}, v{t + 5}
    v_mul_u32_u24 v{PD4 + 3}, {RS}, v{t + 6}
    v_lshl_add_u32 v{SAn}, v{t + 7}, 3, v{vSw}
    v_cvt_pk_bf16_f32 v{t + 3}, v{t + 3}, v{t + 4}
    v_cvt_pk_bf16_f32 v{t + 5}, 0, v{t + 5}
    v_lshlrev_b32 v{t + 4}, 16, v{t + 3}
    v_and_b32 v{t + 3}, 0xffff0000, v{t + 3}
    v_add_f32 v{t + 3}, v{t + 4}, v{t + 3}
    v_add_f32 v{t + 3}, v{t + 3}, v{t + 5}
    v_cvt_pk_bf16_f32 v{PRn}, v{t + 3}, v{REC + 1}
    ''')


def stage_w_aoff(a):
    a(f'ds_write_b32 v{vStg}, v{PD4 + 3} offset:256')


def stage_w_pair(a):
    a(f'ds_write_b32 v{vStg}, v{PRn}')


def stage_w_s(a):
    a(f'''
    ds_write_b64 v{SAo}, {vr(ZZ, 2)}
    s_mov_b64 exec, s[{sVal}:{sVal + 1}]
    ds_write_b64 v{SAn}, {vr(SN, 2)}
    s_mov_b64 exec, -1
    ''')


def slot(a, tau):
    cur, nxt = (D0, D1) if tau % 2 == 0 else (D1, D0)
    even = tau % 2 == 0
    exps = [f'v_exp_f32 v{EE + r}, v{cur + r}' for r in range(16)]
    rcps = [f'v_rcp_f32 v{EE + r}, v{EE + r}' for r in range(16)]
    g = GG + 8 * (tau % 4)
    gn = GG + 8 * ((tau + 1) % 4)
    t1 = (tau + 1) % 8
    t2 = (tau + 2) % 8
    for jj in range(4):
        a(f'ds_read_b128 {vr(nxt + 4 * jj, 4)}, v{AD + jj}')
    k = 0
    if even:
        for c in range(4):
            a(mfma(ACC + 16 * c, SF, MM + 4 * c))
            if c == 0:
                a(f's_add_u32 s3, s{sBeta}, 2')
                a(f's_cmp_lt_u32 s3, s{sEnd}')
                a(f's_cselect_b32 s6, {N}, 0')
            for x in range(3):
                a(exps[k]); k += 1
    else:
        for x in range(2):
            a(exps[k]); k += 1
    a(f'''
    ds_read_b128 {vr(AD, 4)}, v{vLaoff} offset:{32 * t2}
    s_mov_b64 exec, s[{sM0}:{sM0 + 1}]
    ds_read2_b32 {vr(PP, 2)}, v{vLpair} offset0:{8 * t1} offset1:{8 * t1}
    s_mov_b64 exec, s[{sM1}:{sM1 + 1}]
    ds_read2_b32 {vr(PP + 2, 2)}, v{vLpair} offset0:{8 * t1} offset1:{8 * t1}
    s_mov_b64 exec, -1
    ''')
    if tau == 6:
        stage_w_pair(a)
    a(exps[k]); k += 1
    if tau == 1:
        a(f'buffer_load_dwordx2 {vr(POSQ, 2)}, v{SAn}, s[8:11], 0 offen')
        a(f'ds_read_b128 {vr(PD4, 4)}, v{PRn}')
    a(f'buffer_load_dwordx4 {vr(g, 4)}, {vr(IDX, 2)}, s[4:7], 0 idxen offen')
    a(exps[k]); k += 1
    a(f'buffer_load_dwordx4 {vr(g + 4, 4)}, {vr(IDX, 2)}, s[4:7], 0 idxen offen offset:128')
    a(f'ds_read_u16 v{IDX}, v{vLidx} offset:{64 * (tau + 5)}')
    if tau == 0:
        a(f'ds_read_b64 {vr(REC, 2)}, v{vLrec} offset:512')
    if not even:
        b = tau // 2
        a(f'ds_read_b64_tr_b16 {vr(SF, 2)}, v{vSr} offset:{1024 * b}')
        a(f'ds_read_b64_tr_b16 {vr(SF + 2, 2)}, v{vSr} offset:{1024 * b + 512}')
        if tau == 7:
            stage_w_s(a)
    while k < 16:
        a(exps[k]); k += 1
    for r in range(0, 16, 2):
        a(f'v_pk_add_f32 {vr(EE + r, 2)}, {vr(EE + r, 2)}, 1.0 op_sel_hi:[1,0]')
    a(f's_waitcnt vmcnt({7 if tau in (1, 2, 3) else 6}) lgkmcnt(0)')
    ms = [mfma(nxt, PP, QQ), mfma(nxt, gn, I0), mfma(nxt, gn + 4, I1)]
    k = 0
    for m in ms:
        a(m)
        for x in range(3):
            a(rcps[k]); k += 1
    while k < 16:
        a(rcps[k]); k += 1
    a(f'''
    v_lshl_add_u64 {vr(AD, 2)}, {vr(AD, 2)}, 0, {vr(AB, 2)}
    v_lshl_add_u64 {vr(AD + 2, 2)}, {vr(AD + 2, 2)}, 0, {vr(AB, 2)}
    ''')
    for r in range(0, 16, 2):
        a(f'v_pk_mul_f32 {vr(EE + r, 2)}, {vr(EE + r, 2)}, {vr(cur + r, 2)}')
    o = 0 if even else 2
    for c in range(4):
        a(f'v_cvt_pk_bf16_f32 v{MM + 4 * c + o}, v{EE + c}, v{EE + 4 + c}')
        a(f'v_cvt_pk_bf16_f32 v{MM + 4 * c + o + 1}, v{EE + 8 + c}, v{EE + 12 + c}')
    if tau == 0:
        a(f'''
        v_mov_b32 v{SAo}, v{SAn}
        v_and_b32 v{SAn}, 0xffff, v{REC}
        v_bfe_u32 v{PRn}, v{REC}, 16, 7
        v_mul_u32_u24 v{SAn}, 6, v{SAn}
        v_lshlrev_b32 v{PRn}, 4, v{PRn}
        v_and_b32 v{SAn}, -4, v{SAn}
        v_add_u32 v{PRn}, {PD}, v{PRn}
        ''')
    if tau == 5:
        stage2(a)
        stage_w_aoff(a)
    if tau == 7:
        a(f'v_add_u32 v{vLidx}, 512, v{vLidx}')
        a(f'v_add_u32 v{vLrec}, 512, v{vLrec}')
    if even:
        a(f'''
        s_cmp_eq_u32 s{sBeta}, s{sGend}
        s_cbranch_scc0 K2_NF{tau}
        s_call_b64 s[{sRet}:{sRet + 1}], K2_FLUSH
        K2_NF{tau}:
        ''')
    else:
        a(f'''
        s_add_u32 s{sBeta}, s{sBeta}, 1
        s_cmp_lt_u32 s{sBeta}, s{sEnd}
        s_cbranch_scc0 K2_DRAIN
        ''')


def flush(a):
    t = EE
    A = lambda c, jj, ii: ACC + 16 * c + 4 * jj + ii
    V1 = lambda jj: t + jj
    V23 = lambda jj: t + 4 + 2 * jj
    V = lambda jj, k: V1(jj) if k == 0 else V23(jj) + k - 1
    aM, aP, Y, Z = t + 12, t + 13, t + 14, t + 15
    a('K2_FLUSH:')
    a(f'''
    s_mul_i32 s3, s{sG}, {8 * RS}
    v_add_u32 v{aM}, s3, v{vFl}
    s_lshl_b32 s3, s{sG}, 7
    v_add_u32 v{aP}, s3, v{vFp}
    s_mov_b32 s{sGp}, s{sG}
    ''')
    for c in range(4):
        for jj in range(4):
            if c == 0:
                a(f'v_mul_f32 v{V1(jj)}, v{WX}, v{A(c, jj, 1)}')
            else:
                a(f'v_fmac_f32 v{V1(jj)}, v{WX + c}, v{A(c, jj, 1)}')
        wp = vr(WX + (c & ~1), 2)
        s = c & 1
        for jj in range(4):
            if c == 0:
                a(f'v_pk_mul_f32 {vr(V23(jj), 2)}, {vr(A(c, jj, 2), 2)}, {wp} op_sel:[0,{s}] op_sel_hi:[1,{s}]')
            else:
                a(f'v_pk_fma_f32 {vr(V23(jj), 2)}, {vr(A(c, jj, 2), 2)}, {wp}, {vr(V23(jj), 2)} op_sel:[0,{s},0] op_sel_hi:[1,{s},1]')
    a(f'v_cmp_ge_u32 vcc, s{sBeta}, v{vGend}')
    for p in range(2):
        for k in range(3):
            a(f'v_permlane16_swap_b32 v{V(2 * p, k)}, v{V(2 * p + 1, k)}')
    a(f'''
    s_and_b32 vcc_lo, vcc_lo, 0x1fff
    s_bcnt1_i32_b32 s{sG}, vcc_lo
    ''')
    for p in range(2):
        for k in range(3):
            a(f'v_add_f32 v{V(2 * p, k)}, v{V(2 * p, k)}, v{V(2 * p + 1, k)}')
    a(f'v_readlane_b32 s{sGend}, v{vGend}, s{sG}')
    for k in range(3):
        a(f'v_add_f32_dpp v{V(1, k)}, v{V(0, k)}, v{V(0, k)} row_ror:8 row_mask:0xf bank_mask:0x3')
    for k in range(3):
        a(f'v_add_f32_dpp v{V(1, k)}, v{V(2, k)}, v{V(2, k)} row_ror:8 row_mask:0xf bank_mask:0xc')
    a(f'''
    v_add_f32_dpp v{Y}, v{V(1, 0)}, v{V(1, 0)} row_half_mirror row_mask:0xf bank_mask:0x5
    s_nop 0
    v_add_f32_dpp v{Z}, v{V(1, 2)}, v{V(1, 2)} row_half_mirror row_mask:0xf bank_mask:0xf
    v_add_f32_dpp v{Y}, v{V(1, 1)}, v{V(1, 1)} row_half_mirror row_mask:0xf bank_mask:0xa
    s_cmp_eq_u32 s{sFm}, 2
    v_add_f32_dpp v{Z}, v{Z}, v{Z} quad_perm:[1,0,3,2] row_mask:0xf bank_mask:0xf
    v_add_f32_dpp v{Y}, v{Y}, v{Y} quad_perm:[1,0,3,2] row_mask:0xf bank_mask:0xf
    s_nop 0
    v_add_f32_dpp v{Z}, v{Z}, v{Z} quad_perm:[2,3,0,1] row_mask:0xf bank_mask:0xf
    v_add_f32_dpp v{Y}, v{Y}, v{Y} quad_perm:[2,3,0,1] row_mask:0xf bank_mask:0xf
    s_cbranch_scc1 K2_FLRET
    s_cmp_eq_u32 s{sFm}, 0
    s_cbranch_scc1 K2_FLW
    K2_FLUSH2:
    ds_read_b32 v{t + 8}, v{aP}
    ds_read_b32 v{t + 9}, v{aP} offset:8
    ''')
    for hf in range(2):
        for jj in (2 * hf, 2 * hf + 1):
            for c in range(4):
                a(f'ds_read_b32 v{t + 4 * (jj & 1) + c}, v{aM} offset:{128 * c + 2 * RS * jj}')
        a('s_waitcnt lgkmcnt(0)')
        for jj in (2 * hf, 2 * hf + 1):
            for c in range(4):
                a(f'v_add_f32 v{A(c, jj, 0)}, v{A(c, jj, 0)}, v{t + 4 * (jj & 1) + c}')
    a(f'''
    v_add_f32 v{Y}, v{Y}, v{t + 8}
    v_add_f32 v{Z}, v{Z}, v{t + 9}
    K2_FLW:
    v_mov_b64 {vr(t + 8, 2)}, 0
    v_mov_b64 {vr(t + 10, 2)}, 0
    ds_write_b32 v{aP}, v{Y}
    ds_write_b32 v{aP}, v{Z} offset:8
    ''')
    for c in range(4):
        a(f'ds_write_b32 v{aM}, v{A(c, 0, 0)} offset:{128 * c}')
    a(f'''
    s_cmp_eq_u32 s{sGp}, 12
    s_cbranch_scc1 K2_FL1
    ''')
    for jj in range(1, 4):
        for c in range(4):
            a(f'ds_write_b32 v{aM}, v{A(c, jj, 0)} offset:{128 * c + 2 * RS * jj}')
    a('K2_FL1:')
    a(f's_cmp_eq_u32 s{sFm}, 2')
    a('s_waitcnt lgkmcnt(0)')
    a('s_cbranch_scc1 K2_FLRET')
    for c in range(4):
        a(mfma(ACC + 16 * c, t + 8, t + 8, '0'))
    a('K2_FLRET:')
    a(f's_setpc_b64 s[{sRet}:{sRet + 1}]')


def zero_acc(a):
    nz = (SPARE - MACC) // 16
    a(f'''
    v_mov_b64 v[32:33], 0
    v_mov_b64 v[34:35], 0
    v_lshlrev_b32 v36, 4, v{vT}
    v_add_u32 v36, {MACC}, v36
    ''')
    for i in range(nz // 512):
        a(f'ds_write_b128 v36, v[32:35] offset:{8192 * i}')
    a(f'''
    s_movk_i32 s3, {nz % 512}
    v_cmp_gt_u32 vcc, s3, v{vT}
    s_and_saveexec_b64 s[{sT0}:{sT0 + 1}], vcc
    ds_write_b128 v36, v[32:35] offset:{8192 * (nz // 512)}
    s_mov_b64 exec, -1
    ''')


def gen_k3(a):
    a('''
    .p2align 8
    .globl egnn_k3_kernel
    .type egnn_k3_kernel,@function
    egnn_k3_kernel:
    s_cmp_eq_u32 s2, 0
    s_cbranch_scc0 K3_END
    s_load_dwordx2 s[42:43], s[0:1], 80
    s_memrealtime s[44:45]
    s_waitcnt lgkmcnt(0)
    ''')
    srd(a, 16, 42, 0x1100000, 64 * K1_GRID)
    srd(a, 20, 42, 0x1000000, 256 * 2048)
    a('''
    v_lshlrev_b32 v1, 6, v0
    v_mov_b32 v4, 0
    v_mov_b32 v5, -1
    v_mov_b32 v8, 0
    v_mov_b32 v9, -1
    v_mov_b32 v12, 0
    ''')
    for i in range(6):
        a(f'''
        v_min_u32 v2, {64 * (K1_GRID - 1)}, v1
        buffer_load_dwordx2 v[6:7], v2, s[16:19], 0 offen
        v_add_u32 v1, 4096, v1
        s_waitcnt vmcnt(0)
        v_sub_u32 v6, s44, v6
        v_sub_u32 v7, s44, v7
        v_max_u32 v4, v4, v6
        v_min_u32 v5, v5, v7
        ''')
    a('v_lshlrev_b32 v1, 8, v0')
    for i in range(32):
        a(f'''
        buffer_load_dwordx2 v[6:7], v1, s[20:23], 0 offen offset:248
        buffer_load_dword v10, v1, s[20:23], 0 offen
        buffer_load_dword v11, v1, s[20:23], 0 offen offset:{4 * int(OPT.get('ampk', 10))}
        v_add_u32 v1, 16384, v1
        s_waitcnt vmcnt(0)
        v_sub_u32 v6, s44, v6
        v_sub_u32 v7, s44, v7
        v_sub_u32 v10, v11, v10
        v_max_u32 v8, v8, v6
        v_min_u32 v9, v9, v7
        v_max_u32 v12, v12, v10
        ''')
    for d in ('row_shr:1', 'row_shr:2', 'row_shr:4', 'row_shr:8', 'row_bcast:15', 'row_bcast:31'):
        a(f'''
        s_nop 1
        v_max_u32_dpp v4, v4, v4 {d} row_mask:0xf bank_mask:0xf
        v_min_u32_dpp v5, v5, v5 {d} row_mask:0xf bank_mask:0xf
        v_max_u32_dpp v8, v8, v8 {d} row_mask:0xf bank_mask:0xf
        v_min_u32_dpp v9, v9, v9 {d} row_mask:0xf bank_mask:0xf
        v_max_u32_dpp v12, v12, v12 {d} row_mask:0xf bank_mask:0xf
        ''')
    q = {'0': 's_mov_b32 s3, 0', 'k1': 's_sub_u32 s3, s4, s5', 'gap': 's_sub_u32 s3, s5, s8', 'k2': 's_sub_u32 s3, s8, s9',
         'cyc': 's_lshr_b32 s3, s12, 4', 'gap3': 's_mov_b32 s3, s9'}[OPT['amp']]
    a(f'''
    s_nop 1
    v_readlane_b32 s4, v4, 63
    v_readlane_b32 s5, v5, 63
    v_readlane_b32 s8, v8, 63
    v_readlane_b32 s9, v9, 63
    v_readlane_b32 s12, v12, 63
    s_nop 3
    {q}
    s_min_u32 s3, s3, 20000
    s_mul_i32 s3, s3, 10
    s_add_u32 s3, s3, 5000
    K3_L:
    s_memrealtime s[46:47]
    s_waitcnt lgkmcnt(0)
    s_sub_u32 s46, s46, s44
    s_cmp_lt_u32 s46, s3
    s_cbranch_scc1 K3_L
    K3_END:
    s_endpgm
    ''')


def kd(name, vgpr, sgpr):
    return f'''.section .rodata,"a"
.p2align 6
.amdhsa_kernel {name}
  .amdhsa_next_free_vgpr {vgpr}
  .amdhsa_next_free_sgpr {sgpr}
  .amdhsa_accum_offset {(vgpr + 3) // 4 * 4}
  .amdhsa_group_segment_fixed_size 0
  .amdhsa_kernarg_size 88
  .amdhsa_user_sgpr_count 2
  .amdhsa_user_sgpr_kernarg_segment_ptr 1
  .amdhsa_system_sgpr_workgroup_id_x 1
  .amdhsa_float_denorm_mode_32 3
.end_amdhsa_kernel
'''


HEADER = f'''; EGNN layer: K1 bins the edges by destination bucket and builds B = h @ W2; K2 does the edge MLP,
; @launch kernel=egnn_k1_kernel grid=({K1_GRID},1,1) block=(512,1,1) lds=65536
; @launch kernel=egnn_k2_kernel grid=(256,1,1) block=(512,1,1) lds={LDS_TOTAL}
.amdgcn_target "amdgcn-amd-amdhsa--gfx950"
.text
'''


def build(**opt):
    OPT.update(opt)
    a = Asm()
    gen_k1(a)
    gen_k2(a)
    if OPT.get('amp'):
        gen_k3(a)
        return HEADER.replace('.amdgcn_target', '; @launch kernel=egnn_k3_kernel grid=(1,1,1) block=(64,1,1) lds=0\n.amdgcn_target') + a.text() + kd('egnn_k1_kernel', 105, 64) + kd('egnn_k2_kernel', 256, 96) + kd('egnn_k3_kernel', 32, 64)
    return HEADER + a.text() + kd('egnn_k1_kernel', 105 if OPT['stamps'] else 104, 64) + (kd('egnn_k3_kernel', 32, 64) if OPT.get('amp') else '') + kd('egnn_k2_kernel', 256, 96)


if __name__ == '__main__':
    out = sys.argv[1] if len(sys.argv) > 1 else 'gather_scatter__cheap_equivariant_egnn__graph.s'
    opt = {}
    for x in sys.argv[2:]:
        k, v = x.split('=', 1)
        opt[k] = {'True': True, 'False': False}.get(v, v)
    open(out, 'w').write(build(**opt))
```

```python
import sys, re
import importlib
G = importlib.import_module(sys.argv[1])
def gen_k3(q):
    a = G.Asm()
    a('''
    .p2align 8
    .globl egnn_k3_kernel
    .type egnn_k3_kernel,@function
    egnn_k3_kernel:
    s_cmp_eq_u32 s2, 0
    s_cbranch_scc0 K3_END
    s_load_dwordx2 s[42:43], s[0:1], 80
    s_memrealtime s[44:45]
    s_waitcnt lgkmcnt(0)
    ''')
    G.srd(a, 16, 42, 0x1100000, 64 * G.K1_GRID)
    G.srd(a, 20, 42, 0x1000000, 256 * 2048)
    a('''
    v_lshlrev_b32 v1, 6, v0
    v_mov_b32 v4, 0
    v_mov_b32 v5, -1
    v_mov_b32 v8, 0
    v_mov_b32 v9, -1
    v_mov_b32 v12, -1
    v_mov_b32 v13, -1
    v_mov_b32 v14, 0
    ''')
    for i in range(5):
        a(f'''
        buffer_load_dwordx2 v[6:7], v1, s[16:19], 0 offen
        v_add_u32 v1, 4096, v1
        s_waitcnt vmcnt(0)
        v_sub_u32 v6, s44, v6
        v_sub_u32 v7, s44, v7
        v_max_u32 v4, v4, v6
        v_min_u32 v5, v5, v7
        ''')
    a('v_lshlrev_b32 v1, 8, v0')
    for i in range(31):
        a(f'''
        buffer_load_dwordx4 v[16:19], v1, s[20:23], 0 offen offset:240
        buffer_load_dword v10, v1, s[20:23], 0 offen offset:228
        v_add_u32 v1, 16384, v1
        s_waitcnt vmcnt(0)
        v_sub_u32 v16, s44, v16
        v_sub_u32 v17, s44, v17
        v_sub_u32 v18, s44, v18
        v_sub_u32 v19, s44, v19
        v_max_u32 v8, v8, v18
        v_min_u32 v9, v9, v19
        v_min_u32 v12, v12, v16
        v_min_u32 v13, v13, v17
        v_lshrrev_b32 v11, 3, v0
        v_xor_b32 v10, v10, v11
        v_and_b32 v10, 7, v10
        v_max_u32 v14, v14, v10
        ''')
    for d in ('row_shr:1', 'row_shr:2', 'row_shr:4', 'row_shr:8', 'row_bcast:15', 'row_bcast:31'):
        a(f'''
        s_nop 1
        v_max_u32_dpp v4, v4, v4 {d} row_mask:0xf bank_mask:0xf
        v_min_u32_dpp v5, v5, v5 {d} row_mask:0xf bank_mask:0xf
        v_max_u32_dpp v8, v8, v8 {d} row_mask:0xf bank_mask:0xf
        v_min_u32_dpp v9, v9, v9 {d} row_mask:0xf bank_mask:0xf
        v_min_u32_dpp v12, v12, v12 {d} row_mask:0xf bank_mask:0xf
        v_min_u32_dpp v13, v13, v13 {d} row_mask:0xf bank_mask:0xf
        v_max_u32_dpp v14, v14, v14 {d} row_mask:0xf bank_mask:0xf
        ''')
    e = {'0': 's_mov_b32 s3, 0', 'k1': 's_sub_u32 s3, s4, s5', 'k2start': 's_sub_u32 s3, s4, s8', 'k2': 's_sub_u32 s3, s8, s9',
         'pro': 's_sub_u32 s3, s8, s12', 'loop': 's_sub_u32 s3, s12, s13', 'epi': 's_sub_u32 s3, s13, s9', 'all': 's_sub_u32 s3, s4, s9',
         'xcc': 's_mul_i32 s3, s14, 100'}[q]
    a(f'''
    s_nop 1
    v_readlane_b32 s4, v4, 63
    v_readlane_b32 s5, v5, 63
    v_readlane_b32 s8, v8, 63
    v_readlane_b32 s9, v9, 63
    v_readlane_b32 s12, v12, 63
    v_readlane_b32 s13, v13, 63
    v_readlane_b32 s14, v14, 63
    s_nop 3
    {e}
    s_min_u32 s3, s3, 20000
    s_mul_i32 s3, s3, 10
    s_add_u32 s3, s3, 5000
    K3_L:
    s_memrealtime s[46:47]
    s_waitcnt lgkmcnt(0)
    s_sub_u32 s46, s46, s44
    s_cmp_lt_u32 s46, s3
    s_cbranch_scc1 K3_L
    K3_END:
    s_endpgm
    ''')
    return a.text()
opt = {'stamps': True}
for x in sys.argv[3:]:
    k, v = x.split('=', 1); opt[k] = v
base = G.build(**opt)
for q in sys.argv[2].split(','):
    i = base.index('.section .rodata')
    t = base[:i] + gen_k3(q) + base[i:] + G.kd('egnn_k3_kernel', 32, 64)
    t = t.replace('.amdgcn_target', '; @launch kernel=egnn_k3_kernel grid=(1,1,1) block=(64,1,1) lds=0\n.amdgcn_target', 1)
    open(f'amp_{q}.s', 'w').write(t)
```

```python
import sys, importlib
G = importlib.import_module(sys.argv[1])
opt = {'stamps': True, 'aslist': True}
for x in sys.argv[4:]:
    k, v = x.split('=', 1); opt[k] = v
base = G.build(**opt)
def k3(k, w):
    a = G.Asm()
    a(f'''
    .p2align 8
    .globl egnn_k3_kernel
    .type egnn_k3_kernel,@function
    egnn_k3_kernel:
    s_cmp_eq_u32 s2, 0
    s_cbranch_scc0 K3_END
    s_load_dwordx2 s[42:43], s[0:1], 80
    s_memrealtime s[44:45]
    s_waitcnt lgkmcnt(0)
    ''')
    G.srd(a, 16, 42, 0x1000000 + 256 * w, 256 * 2048)
    a('v_lshlrev_b32 v1, 11, v0\nv_mov_b32 v8, 0')
    for i in range(4):
        a(f'''
        buffer_load_dword v4, v1, s[16:19], 0 offen offset:{0 if k < 60 else 248}
        buffer_load_dword v5, v1, s[16:19], 0 offen offset:{4 * k}
        v_add_u32 v1, 0x20000, v1
        s_waitcnt vmcnt(0)
        v_sub_u32 v4, v5, v4
        v_add_u32 v8, v8, v4
        ''')
    for d in ('row_shr:1', 'row_shr:2', 'row_shr:4', 'row_shr:8', 'row_bcast:15', 'row_bcast:31'):
        a(f's_nop 1\nv_add_u32_dpp v8, v8, v8 {d} row_mask:{"0xa" if d.endswith("15") else "0xc" if d.endswith("31") else "0xf"} bank_mask:0xf')
    a(f'''
    s_nop 1
    v_readlane_b32 s3, v8, 63
    s_nop 3
    s_lshr_b32 s3, s3, {8 if k < 60 else 4}
    s_min_u32 s3, s3, 200000
    s_add_u32 s3, s3, 5000
    K3_L:
    s_memrealtime s[46:47]
    s_waitcnt lgkmcnt(0)
    s_sub_u32 s46, s46, s44
    s_cmp_lt_u32 s46, s3
    s_cbranch_scc1 K3_L
    K3_END:
    s_endpgm
    ''')
    return a.text()
def k3all(lo, hi, mul):
    a = G.Asm()
    a(f'''
    .p2align 8
    .globl egnn_k3_kernel
    .type egnn_k3_kernel,@function
    egnn_k3_kernel:
    s_cmp_eq_u32 s2, 0
    s_cbranch_scc0 K3_END
    s_load_dwordx2 s[42:43], s[0:1], 80
    s_memrealtime s[44:45]
    s_waitcnt lgkmcnt(0)
    ''')
    G.srd(a, 16, 42, 0x1000000, 256 * 2048)
    a('v_lshlrev_b32 v1, 8, v0\nv_mov_b32 v8, 0\nv_mov_b32 v9, -1')
    for i in range(31):
        a(f'''
        buffer_load_dword v4, v1, s[16:19], 0 offen offset:{4 * lo}
        buffer_load_dword v5, v1, s[16:19], 0 offen offset:{4 * hi}
        v_add_u32 v1, 16384, v1
        s_waitcnt vmcnt(0)
        v_sub_u32 v4, s44, v4
        v_sub_u32 v5, s44, v5
        v_max_u32 v8, v8, v4
        v_min_u32 v9, v9, v5
        ''')
    for d in ('row_shr:1', 'row_shr:2', 'row_shr:4', 'row_shr:8', 'row_bcast:15', 'row_bcast:31'):
        a(f's_nop 1\nv_max_u32_dpp v8, v8, v8 {d} row_mask:0xf bank_mask:0xf\nv_min_u32_dpp v9, v9, v9 {d} row_mask:0xf bank_mask:0xf')
    a(f'''
    s_nop 1
    v_readlane_b32 s4, v8, 63
    v_readlane_b32 s5, v9, 63
    s_nop 3
    s_sub_u32 s3, s4, s5
    s_mul_i32 s3, s3, {mul}
    s_min_u32 s3, s3, 200000
    s_add_u32 s3, s3, 5000
    K3_L:
    s_memrealtime s[46:47]
    s_waitcnt lgkmcnt(0)
    s_sub_u32 s46, s46, s44
    s_cmp_lt_u32 s46, s3
    s_cbranch_scc1 K3_L
    K3_END:
    s_endpgm
    ''')
    return a.text()
for q in sys.argv[3].split(','):
    if q[0] == 'r':
        lo, hi, mul = (int(x) for x in q[1:].split('x'))
        k3 = lambda k, w: k3all(lo, hi, mul)
        k = w = 0
    else:
        k, w = (int(x) for x in q.split('w'))
    i = base.index('.section .rodata')
    t = base[:i] + k3(k, w) + base[i:] + G.kd('egnn_k3_kernel', 32, 64)
    t = t.replace('.amdgcn_target', '; @launch kernel=egnn_k3_kernel grid=(1,1,1) block=(64,1,1) lds=0\n.amdgcn_target', 1)
    open(f'{sys.argv[2]}_{q}.s', 'w').write(t)
```
